```python
import torch

def _softmax(x, axis=-1):
    return torch.softmax(x, dim=axis)
def _gelu(x):
    return torch.nn.functional.gelu(x, approximate="tanh")
def _silu(x):
    return torch.nn.functional.silu(x)
def _sigmoid(x):
    return torch.sigmoid(x)
def _layernorm(x, axis=-1, eps=1e-5):
    m = x.mean(dim=axis, keepdim=True)
    v = x.var(dim=axis, keepdim=True, unbiased=False)
    return (x - m) / torch.sqrt(v + eps)
def _scatter_add(tgt, idx, src, axis=0):
    return tgt.clone().index_add_(axis, idx, src)
def _segment_sum(src, seg, n):
    out = torch.zeros((n,) + src.shape[1:], dtype=src.dtype)
    return out.index_add_(0, seg, src)
def _pad(x, pw):
    flat = tuple(v for pair in reversed(pw) for v in pair)
    return torch.nn.functional.pad(x, flat)

kernel_name = 'parallel_sum__compressed_kv_cla__dense_activation_squared_relu__prompt'

def setup_inputs():

    _w = (lambda a: (lambda t: t.to(torch.bfloat16) if t.is_floating_point() else t)(torch.as_tensor(a)))
    def _A_setup():
        B, H, Sq, Sk, D, M = 1, 16, 2048, 2048, 256, 448
        Dc = 4 * D
        return {
            "x": _w((lambda *s: torch.randn(*s, dtype=torch.bfloat16) * 0.05)(B, Sq, M)),
            "c_kv": _w((lambda *s: torch.randn(*s, dtype=torch.bfloat16) * 1.6)(B, Sk, Dc)),
            "w_q": _w((lambda *s: torch.randn(*s, dtype=torch.bfloat16) * 0.8)(M, H, D) * (M ** -0.5)),
            "w_uk": _w((lambda *s: torch.randn(*s, dtype=torch.bfloat16) * 0.8)(Dc, H, D) * (Dc ** -0.5)),
            "w_uv": _w((lambda *s: torch.randn(*s, dtype=torch.bfloat16) * 1.6)(Dc, H, D) * (Dc ** -0.5)),
            "w_o": _w((lambda *s: torch.randn(*s, dtype=torch.bfloat16) * 1.6)(H, D, M) * ((H * D) ** -0.5)),
        }
    _A_in = _A_setup()

    def _B_setup():
        B, S, D, F = 1, 2048, 448, 1792
        return {
            "x": _w((lambda *s: torch.randn(*s, dtype=torch.bfloat16) * 0.05)(B, S, D)),
            "w1": _w((lambda *s: torch.randn(*s, dtype=torch.bfloat16) * 0.05)(D, F)),
            "b1": _w((lambda *s: torch.randn(*s, dtype=torch.bfloat16) * 0.2)(F)),
            "w2": _w((lambda *s: torch.randn(*s, dtype=torch.bfloat16) * 0.05)(F, D)),
            "b2": _w((lambda *s: torch.randn(*s, dtype=torch.bfloat16) * 0.8)(D)),
        }
    _B_in = _B_setup()

    return {
        "A_x": _A_in["x"],
        "A_c_kv": _A_in["c_kv"],
        "A_w_q": _A_in["w_q"],
        "A_w_uk": _A_in["w_uk"],
        "A_w_uv": _A_in["w_uv"],
        "A_w_o": _A_in["w_o"],
        "B_x": _B_in["x"],
        "B_w1": _B_in["w1"],
        "B_b1": _B_in["b1"],
        "B_w2": _B_in["w2"],
        "B_b2": _B_in["b2"],
    }

def reference(A_x, A_c_kv, A_w_q, A_w_uk, A_w_uv, A_w_o, B_x, B_w1, B_b1, B_w2, B_b2):
    def _A_ref(x, c_kv, w_q, w_uk, w_uv, w_o):
        B, Sq, M = x.shape[0], x.shape[1], x.shape[2]
        Sk = c_kv.shape[1]
        H, D = w_q.shape[1], w_q.shape[2]
        q = torch.einsum("bqm,mhd->bhqd", x, w_q)
        k = torch.einsum("bkc,chd->bhkd", c_kv, w_uk)
        v = torch.einsum("bkc,chd->bhkd", c_kv, w_uv)
        scores = torch.einsum("bhqd,bhkd->bhqk", q, k) * (D ** -0.5)
        off = Sk - Sq
        qi = torch.arange(Sq)[:, None]
        kj = torch.arange(Sk)[None, :]
        cmask = kj <= (qi + off)
        scores = torch.where(cmask[None, None], scores, -1e9)
        p = _softmax(scores, axis=-1)
        ctx = torch.einsum("bhqk,bhkd->bhqd", p, v)
        return torch.einsum("bhqd,hdm->bqm", ctx, w_o)

    def _B_ref(x, w1, b1, w2, b2):
        h = torch.einsum("bsd,df->bsf", x, w1) + b1
        zero = torch.zeros_like(h)
        r = torch.where(h > zero, h, zero)
        h = r * r
        out = torch.einsum("bsf,fd->bsd", h, w2) + b2
        return out

    x = A_x
    xn = _layernorm(x, axis=-1)
    return x + _A_ref(xn, A_c_kv, A_w_q, A_w_uk, A_w_uv, A_w_o) + _B_ref(xn, B_w1, B_b1, B_w2, B_b2)
```

```python
import re

class Asm:
    def __init__(self):
        self.L = []
    def __call__(self, s):
        for ln in s.split("\n"):
            ln = ln.strip()
            if ln: self.L.append(ln)
    def label(self, n): self.L.append(n + ":")
    def resolve_vm(self, start):
        q = []; out = []
        for ln in self.L[start:]:
            if ln.startswith("WAITVM"):
                tag = ln.split()[1]
                idx = max((i for i, t in enumerate(q) if t == tag), default=-1)
                if idx >= 0:
                    n = len(q) - idx - 1; q = q[idx+1:]
                    assert n <= 63, n
                    out.append(f"s_waitcnt vmcnt({n})")
                continue
            if ln.startswith(("buffer_", "global_")):
                tag = ln.split(";@")[1].strip() if ";@" in ln else None
                q.append(tag); ln = ln.split(";@")[0].strip()
                assert len(q) <= 63, "too many outstanding"
            out.append(ln)
        self.L[start:] = out
        return q
    def text(self): return "\n".join(("" if l.endswith(":") or l.startswith(".") or l.startswith(";") else "    ") + l for l in self.L) + "\n"

def vr(b, n=1, k="v"):
    return f"{k}{b}" if n == 1 else f"{k}[{b}:{b+n-1}]"
def ar(b, n=1): return vr(b, n, "a")
def sr(b, n=1): return vr(b, n, "s")

class Weave:
    def __init__(self, mfmas):
        self.m = list(mfmas); n = len(self.m)
        self.pre = [[] for _ in range(n)]; self.post = [[] for _ in range(n)]
    def spread(self, instrs, g0, g1):
        n = len(instrs)
        for k, ins in enumerate(instrs):
            g = g0 + (k * (g1 - g0)) // n
            if isinstance(ins, (list, tuple)): self.post[g].extend(ins)
            else: self.post[g].append(ins)
    def emit(self, A):
        for i, m in enumerate(self.m):
            for p in self.pre[i]: A(p)
            A(m)
            for p in self.post[i]: A(p)

_reg = re.compile(r"\b([vas])(\d+)\b|\b([vas])\[(\d+):(\d+)\]")
def regs_of(op):
    out = set()
    op = op.strip()
    if op in ("vcc",): return {("s", 106), ("s", 107)}
    if op == "exec": return {("s", 126), ("s", 127)}
    if op == "m0": return {("s", 124)}
    for m in _reg.finditer(op):
        if m.group(1): out.add((m.group(1), int(m.group(2))))
        else:
            for r in range(int(m.group(4)), int(m.group(5)) + 1): out.add((m.group(3), r))
    return out

TRANS = ("v_exp_f32", "v_log_f32", "v_rcp_f32", "v_rsq_f32", "v_sqrt_f32", "v_sin_f32", "v_cos_f32")
def parse(line):
    line = line.split(";")[0].strip()
    if not line or line.endswith(":") or line.startswith("."): return None
    parts = line.split(None, 1)
    opc = parts[0]
    rest = parts[1] if len(parts) > 1 else ""
    ops = [o.strip() for o in re.split(r",(?![^\[]*\])", rest)] if rest else []
    mods = ""
    if ops:
        lp = ops[-1].split(None, 1)
        if len(lp) > 1: ops[-1] = lp[0]; mods = lp[1]
    d = dict(opc=opc, ops=ops, mods=mods, w=set(), r=set(), kind="other", line=line)
    R = [regs_of(o) for o in ops]
    if opc.startswith("v_mfma"):
        d["kind"] = "mfma"; d["w"] = R[0]; d["ab"] = R[1] | R[2]; d["c"] = R[3]; d["r"] = R[1] | R[2] | R[3]
        d["passes"] = 8 if "32x32x16" in opc else 4
    elif opc.startswith("v_cmp"):
        d["kind"] = "valu"; d["w"] = R[0]; d["r"] = set().union(*R[1:])
    elif opc.startswith("v_readfirstlane") or opc.startswith("v_readlane"):
        d["kind"] = "valu"; d["w"] = R[0]; d["r"] = set().union(*R[1:]); d["rl"] = True
    elif opc.startswith("v_permlane"):
        d["kind"] = "valu"; d["w"] = R[0] | R[1]; d["r"] = R[0] | R[1]; d["perm"] = True
    elif opc.startswith("v_"):
        d["kind"] = "valu"; d["w"] = set(R[0]); d["r"] = set().union(*R[1:]) if len(R) > 1 else set()
        if opc.startswith(("v_fmac", "v_pk_fmac", "v_dot2c")): d["r"] |= R[0]
        if opc.startswith(("v_add_co", "v_sub_co", "v_addc_co")): d["w"] |= R[1]
        if opc.startswith("v_cndmask") and len(ops) == 3: d["r"] |= regs_of("vcc")
        if opc.replace("_e32", "").replace("_e64", "") in TRANS: d["trans"] = True
        if "dpp" in opc or "row_" in mods or "quad_perm" in mods: d["dpp"] = True
    elif opc.startswith("ds_read") or opc.startswith("ds_bpermute") or opc.startswith("ds_swizzle"):
        d["kind"] = "ds"; d["w"] = R[0]; d["r"] = set().union(*R[1:])
    elif opc.startswith("ds_write"):
        d["kind"] = "ds"; d["r"] = set().union(*R)
    elif opc.startswith(("buffer_load", "global_load")):
        d["kind"] = "vmem"
        if "lds" in mods.split() or "_lds_" in opc:
            d["r"] = set().union(*R) | regs_of("m0"); d["dma"] = True
        else:
            d["w"] = R[0]; d["r"] = set().union(*R[1:])
    elif opc.startswith(("buffer_store", "global_store", "buffer_atomic", "global_atomic")):
        d["kind"] = "vmem"; d["r"] = set().union(*R)
        if "x4" in opc or "x3" in opc: d["wide"] = R[0] if opc.startswith("buffer") else R[1]
    elif opc.startswith("s_"):
        d["kind"] = "salu"
        if opc.startswith(("s_cmp", "s_cbranch", "s_branch", "s_waitcnt", "s_barrier", "s_nop", "s_endpgm", "s_setprio", "s_sleep", "s_bitcmp")):
            d["r"] = set().union(*R) if R else set()
        else:
            d["w"] = set(R[0]) if R else set(); d["r"] = set().union(*R[1:]) if len(R) > 1 else set()
            if "saveexec" in opc: d["w"] |= regs_of("exec")
    return d

def check(lines, name=""):
    ins = []
    for ln in lines:
        p = parse(ln)
        if p: ins.append(p)
    errs = []
    for i, c in enumerate(ins):
        dist = 0
        for j in range(i - 1, max(-1, i - 24), -1):
            p = ins[j]
            need = 0; why = ""
            def req(n, w):
                nonlocal need, why
                if n > need: need, why = n, w
            if p["kind"] == "valu":
                wv = {r for r in p["w"] if r[0] in "va"}; wsg = {r for r in p["w"] if r[0] == "s"}
                if c["kind"] == "mfma" and wv & c["r"]: req(2, "valu->mfma")
                if p.get("trans") and c["kind"] == "valu" and not c.get("trans") and wv & c["r"]: req(1, "trans->valu")
                if p.get("trans") and c["kind"] in ("ds", "vmem") and wv & c["r"]: req(1, "trans->mem")
                if c.get("rl") and wv & c["r"]: req(1, "valu->readlane")
                if c.get("perm") and wv & c["r"]: req(2, "valu->permlane")
                if c.get("dpp") and wv & c["r"]: req(2, "valu->dpp")
                if c["kind"] == "valu" and wsg & c["r"]: req(4 if c.get("rl") else 2, "valu sgpr->valu")
                if c["kind"] == "vmem" and wsg & c["r"]: req(5, "valu sgpr->vmem")
            if p["kind"] == "mfma":
                P = p["passes"]
                big = {8: 12, 4: 8}[P]
                if c["kind"] == "mfma":
                    if p["w"] & c["ab"]: req(big, "mfma->mfma AB")
                    if p["w"] & c["c"] and not (p["w"] == c["c"] and c["passes"] == P): req({8: 10, 4: 6}[P], "mfma->mfma C overlap")
                    if p["w"] & c["w"] and not (p["w"] & c["c"]): req({8: 10, 4: 6}[P], "mfma->mfma WAW(conservative)")
                elif c["kind"] == "valu":
                    if p["w"] & (c["r"] | c["w"]): req(big, "mfma->valu")
                    if p["c"] & c["w"]: req({8: 7, 4: 3}[P], "mfma C WAR")
                elif c["kind"] in ("ds", "vmem"):
                    if p["w"] & (c["r"] | c["w"]): req(big, "mfma->mem")
            if p["kind"] == "salu" and ("s", 124) in p["w"] and c.get("dma"): req(1, "m0->dma")
            if p.get("wide") and c["kind"] == "valu" and p["wide"] & c["w"]: req(2, "wide store WAR")
            if p.get("wide") and c["kind"] in ("ds", "vmem", "mfma") and p["wide"] & c["w"]: req(1, "wide store WAR")
            if need > dist:
                errs.append(f"{name}: need {need} have {dist} [{why}]: '{p['line']}' -> '{c['line']}'")
            if p["opc"] == "s_nop": dist += int(p["ops"][0], 0) + 1
            else: dist += 1
            if dist > 20: break
    return errs
```

```python
from asmlib import *
XN_OFF = 0
KV_OFF = 0x200000
SLAB_OFF = 0x2200000
WS_BYTES = 268435456

def srd(A, d, ptr_lo, nbytes):
    A(f"s_mov_b32 s{d}, s{ptr_lo}")
    A(f"s_and_b32 s{d+1}, s{ptr_lo+1}, 0xffff")
    A(f"s_mov_b32 s{d+2}, {nbytes}")
    A(f"s_mov_b32 s{d+3}, 0x00020000")

def wave_sum(A, v, t, sdst):
    for off in (0x041F, 0x081F, 0x101F, 0x201F, 0x401F):
        A(f"ds_swizzle_b32 v{t}, v{v} offset:{off}")
        A("s_waitcnt lgkmcnt(0)")
        A(f"v_add_f32 v{v}, v{v}, v{t}")
    A("s_nop 0")
    A(f"v_readlane_b32 s{sdst}, v{v}, 32")
    A("s_nop 1")
    A(f"v_add_f32 v{v}, s{sdst}, v{v}")
    A("s_nop 0")
    A(f"v_readlane_b32 s{sdst}, v{v}, 0")
    A("s_nop 1")

STAMP_OFF = 0x8000000
def stamp(A, idx, on):
    if on:
        A(f"s_memrealtime s[{64+2*idx}:{65+2*idx}]")
        A(f"s_memtime s[{82+2*idx}:{83+2*idx}]")
def stamp_out(A, n, on, srd_ws, koff=0):
    if on:
        A("s_waitcnt vmcnt(0)")
        stamp(A, n-1, on)
        A("s_waitcnt lgkmcnt(0)")
        A(f"s_lshl_b32 s3, s2, 6")
        A(f"s_add_u32 s3, s3, {STAMP_OFF + koff}")
        A("v_mov_b32 v2, 0")
        A("v_cmp_eq_u32 vcc, 0, v0")
        A("s_and_saveexec_b64 s[80:81], vcc")
        for i in range(n):
            A(f"v_mov_b32 v3, s{64+2*i}")
            A(f"v_mov_b32 v4, s{82+2*i}")
            A(f"buffer_store_dword v3, v2, s[{srd_ws}:{srd_ws+3}], s3 offen offset:{8*i}")
            A(f"buffer_store_dword v4, v2, s[{srd_ws}:{srd_ws+3}], s3 offen offset:{8*i+4}")
            A("s_nop 1")

def gen_k1(name="kv_kernel", st_on=False):
    A = Asm()
    A(f".p2align 8\n.type {name},@function")
    A.label(name)
    A("s_cmp_ge_u32 s2, 256")
    A(f"s_cbranch_scc1 L_{name}_end")
    stamp(A, 0, st_on)
    A("s_load_dwordx4 s[36:39], s[0:1], 0")
    A("s_load_dwordx4 s[40:43], s[0:1], 24")
    A("s_load_dwordx2 s[44:45], s[0:1], 104")
    A("v_and_b32 v1, 63, v0")
    A("v_lshrrev_b32 v26, 6, v0")
    A("s_and_b32 s46, s2, 7")
    A("v_readfirstlane_b32 s20, v26")
    A("s_lshr_b32 s47, s2, 3")
    A("s_and_b32 s24, s47, 7")
    A("s_lshr_b32 s47, s47, 3")
    A("s_lshr_b32 s25, s47, 1")
    A("s_and_b32 s47, s47, 1")
    A("s_lshl_b32 s23, s46, 1")
    A("s_add_u32 s23, s23, s47")
    A("s_lshr_b32 s21, s20, 1")
    A("s_and_b32 s22, s20, 1")
    A("s_lshl_b32 s30, s20, 13")
    A("s_waitcnt lgkmcnt(0)")
    srd(A, 4, 38, 2048*1024*2)
    A("s_cmp_eq_u32 s25, 0")
    A("s_cselect_b32 s40, s40, s42")
    A("s_cselect_b32 s41, s41, s43")
    srd(A, 8, 40, 1024*4096*2)
    srd(A, 12, 36, 2048*448*2)
    srd(A, 16, 44, WS_BYTES)
    A("s_lshl_b32 s48, s2, 3")
    A("s_lshl_b32 s49, s20, 1")
    A("s_add_u32 s48, s48, s49")
    A("s_mul_i32 s49, s48, 896")
    A("v_lshlrev_b32 v27, 4, v1")
    for r in range(100, 108): A(f"v_mov_b32 v{r}, 0")
    A("s_mov_b32 s50, -1")
    A("s_mov_b32 s51, 0x00ffffff")
    A("s_mov_b64 exec, s[50:51]")
    A("buffer_load_dwordx4 v[100:103], v27, s[12:15], s49 offen")
    A("buffer_load_dwordx4 v[104:107], v27, s[12:15], s49 offen offset:896")
    A("s_mov_b64 exec, -1")
    A("s_lshl_b32 s52, s24, 8")
    A("s_lshl_b32 s53, s20, 6")
    A("s_add_u32 s52, s52, s53")
    A("v_lshrrev_b32 v28, 3, v1")
    A("v_add_u32 v28, s52, v28")
    A("v_lshlrev_b32 v28, 11, v28")
    A("v_lshrrev_b32 v29, 4, v1")
    A("v_and_b32 v30, 7, v1")
    A("v_xor_b32 v29, v29, v30")
    A("v_xor_b32 v30, 4, v29")
    A("v_lshlrev_b32 v29, 4, v29")
    A("v_lshlrev_b32 v30, 4, v30")
    for c in range(8):
        k = 8*c*2048 - (c & 3)*1024
        A(f"v_add_u32 v{2+c}, v28, v{29 + (c & 1)}")
        if k: A(f"v_add_u32 v{2+c}, {k}, v{2+c}")
    A("v_lshrrev_b32 v28, 5, v1")
    A("s_lshl_b32 s52, s20, 4")
    A("v_add_u32 v29, s52, v28")
    A("v_lshlrev_b32 v29, 13, v29")
    A("s_lshl_b32 s52, s23, 9")
    A("v_add_u32 v29, s52, v29")
    A("v_lshlrev_b32 v28, 2, v28")
    A("v_and_b32 v30, 31, v1")
    A("v_xor_b32 v28, v28, v30")
    A("v_xor_b32 v30, 8, v28")
    A("v_lshlrev_b32 v28, 4, v28")
    A("v_lshlrev_b32 v30, 4, v30")
    for c in range(8):
        k = 2*c*8192 - (c & 3)*1024
        A(f"v_add_u32 v{10+c}, v29, v{28 if (c & 1) == 0 else 30}")
        if k: A(f"v_add_u32 v{10+c}, {k}, v{10+c}")
    A("s_mov_b32 s26, 0")
    A("s_mov_b32 s27, 0")
    def dma_list(st):
        L = []
        for c in range(8):
            g = []
            if c % 4 == 0: g.append(f"s_add_u32 m0, s30, {st*32768 + (c >> 2)*4096}"); g.append("s_nop 0")
            g.append(f"buffer_load_dwordx4 v{2+c}, s[4:7], s26 offen offset:{(c & 3)*1024} lds")
            L.append(g)
        for c in range(8):
            g = []
            if c % 4 == 0: g.append(f"s_add_u32 m0, s30, {65536 + st*32768 + (c >> 2)*4096}"); g.append("s_nop 0")
            g.append(f"buffer_load_dwordx4 v{10+c}, s[8:11], s27 offen offset:{(c & 3)*1024} lds")
            if c == 7:
                g.append("s_add_u32 s26, s26, 128")
                g.append(f"s_add_u32 s27, s27, {64*8192}")
            L.append(g)
        return L
    for st in range(2):
        for g in dma_list(st):
            for i in g: A(i)
    A("v_and_b32 v28, 31, v1")
    A("s_lshl_b32 s52, s21, 7")
    A("v_add_u32 v28, s52, v28")
    A("v_lshlrev_b32 v28, 7, v28")
    A("v_lshrrev_b32 v29, 1, v1")
    A("v_and_b32 v29, 7, v29")
    A("v_lshrrev_b32 v30, 5, v1")
    A("v_xor_b32 v29, v29, v30")
    for ks in range(4):
        A(f"v_xor_b32 v31, {2*ks}, v29")
        A(f"v_lshl_add_u32 v{18+ks}, v31, 4, v28")
    A("v_lshrrev_b32 v28, 2, v1")
    A("v_and_b32 v28, 3, v28")
    A("v_lshl_add_u32 v29, v30, 3, v28")
    A("v_lshlrev_b32 v29, 9, v29")
    A("v_lshrrev_b32 v31, 4, v1")
    A("v_and_b32 v31, 1, v31")
    A("v_lshl_add_u32 v29, v31, 5, v29")
    A("v_and_b32 v31, 3, v1")
    A("v_lshl_add_u32 v29, v31, 3, v29")
    A("s_lshl_b32 s52, s22, 8")
    A("s_add_u32 s52, s52, 65536")
    A("v_add_u32 v29, s52, v29")
    for nb in range(4):
        A(f"v_xor_b32 v31, {nb}, v28")
        A(f"v_lshl_add_u32 v{22+nb}, v31, 6, v29")
    A("s_waitcnt vmcnt(32)")
    for row in range(2):
        src = 100 + 4*row
        X = 110
        for e in range(4):
            A(f"v_lshlrev_b32 v{X+2*e}, 16, v{src+e}")
            A(f"v_and_b32 v{X+2*e+1}, 0xffff0000, v{src+e}")
        A(f"v_add_f32 v120, v{X}, v{X+1}")
        for e in range(2, 8): A(f"v_add_f32 v120, v120, v{X+e}")
        wave_sum(A, 120, 121, 54)
        A(f"v_mov_b32 v122, s54")
        A(f"v_mul_f32 v122, {hex(0x3b124925)}, v122")
        A("v_mov_b32 v120, 0")
        A("s_mov_b64 exec, s[50:51]")
        for e in range(8):
            A(f"v_sub_f32 v121, v{X+e}, v122")
            A(f"v_fmac_f32 v120, v121, v121")
        A("s_mov_b64 exec, -1")
        wave_sum(A, 120, 121, 54)
        A(f"v_mov_b32 v123, s54")
        A(f"v_mul_f32 v123, {hex(0x3b124925)}, v123")
        A("v_cvt_pk_bf16_f32 v124, v122, v123")
        A("v_lshlrev_b32 v122, 16, v124")
        A("v_and_b32 v123, 0xffff0000, v124")
        A(f"v_add_f32 v123, {hex(0x3727c5ac)}, v123")
        A("v_cvt_pk_bf16_f32 v124, v123, v123")
        A("v_lshlrev_b32 v123, 16, v124")
        A("v_sqrt_f32 v123, v123")
        A("s_nop 0")
        A("v_cvt_pk_bf16_f32 v124, v123, v123")
        A("v_lshlrev_b32 v123, 16, v124")
        A("v_rcp_f32 v123, v123")
        for e in range(8): A(f"v_sub_f32 v{X+e}, v{X+e}, v122")
        for e in range(4):
            A(f"v_cvt_pk_bf16_f32 v124, v{X+2*e}, v{X+2*e+1}")
            A(f"v_lshlrev_b32 v{X+2*e}, 16, v124")
            A(f"v_and_b32 v{X+2*e+1}, 0xffff0000, v124")
        for e in range(8): A(f"v_mul_f32 v{X+e}, v{X+e}, v123")
        for e in range(4): A(f"v_cvt_pk_bf16_f32 v{src+e}, v{X+2*e}, v{X+2*e+1}")
    A("s_lshr_b32 s52, s48, 5")
    A("s_mul_i32 s52, s52, 28*1024")
    A("s_and_b32 s53, s48, 31")
    A("s_lshl_b32 s53, s53, 4")
    A("s_add_u32 s52, s52, s53")
    if XN_OFF: A(f"s_add_u32 s52, s52, {XN_OFF}")
    A("v_lshlrev_b32 v28, 9, v1")
    A("s_mov_b64 exec, s[50:51]")
    A("buffer_store_dwordx4 v[100:103], v28, s[16:19], s52 offen")
    A("buffer_store_dwordx4 v[104:107], v28, s[16:19], s52 offen offset:16")
    A("s_mov_b64 exec, -1")
    A("s_waitcnt vmcnt(18)")
    A("s_barrier")
    def reads(st, ks, fs):
        L = []
        base = 32 + 32*fs
        for j in range(4):
            L.append(f"ds_read_b64_tr_b16 v[{base+16+4*j}:{base+16+4*j+1}], v{22+j} offset:{st*32768 + (16*ks)*512}")
            L.append(f"ds_read_b64_tr_b16 v[{base+16+4*j+2}:{base+16+4*j+3}], v{22+j} offset:{st*32768 + (16*ks+4)*512}")
            L.append(f"ds_read_b128 v[{base+4*j}:{base+4*j+3}], v{18+ks} offset:{st*32768 + j*4096}")
        return L
    stamp(A, 1, st_on)
    if st_on: A("s_waitcnt lgkmcnt(0)")
    for i in reads(0, 0, 0): A(i)
    A("s_mov_b32 s28, 0")
    A("s_cmp_eq_u32 s25, 0")
    A(f"s_cbranch_scc0 L_{name}_V")
    def chunk(isV, st, first, dma, last, pend):
        for ks in range(4):
            fs = ks & 1
            base = 32 + 32*fs
            M = []
            for nb in range(4):
                for rb in range(4):
                    rbb = rb if nb % 2 == 0 else 3 - rb
                    acc = (nb*4 + rbb)*16
                    c = vr(base + 4*rbb, 4); w = vr(base + 16 + 4*nb, 4)
                    a, b = (c, w) if isV else (w, c)
                    cin = "0" if (first and ks == 0) else ar(acc, 16)
                    M.append(f"v_mfma_f32_32x32x16_bf16 {ar(acc,16)}, {a}, {b}, {cin}")
            W = Weave(M)
            W.pre[0].append("s_waitcnt lgkmcnt(0)")
            if ks == 3:
                if not last:
                    W.pre[0].append("s_waitcnt vmcnt(0)")
                    W.pre[0].append("s_barrier")
                    W.spread(reads(1 - st, 0, 0), 0, 6)
                    if dma:
                        pend = dma_list(st)
                        W.spread(pend[:6], 6, 16); pend = pend[6:]
            else:
                W.spread(reads(st, ks + 1, 1 - fs), 0, 6)
                if pend:
                    W.spread(pend[:10], 6, 16); pend = pend[10:]
            W.emit(A)
        return pend
    for isV in (0, 1):
        tag = "V" if isV else "K"
        if isV: A.label(f"L_{name}_V")
        pend = chunk(isV, 0, True, True, False, [])
        pend = chunk(isV, 1, False, True, False, pend)
        A.label(f"L_{name}_loop{tag}")
        p2 = chunk(isV, 0, False, True, False, pend)
        p2 = chunk(isV, 1, False, True, False, p2)
        assert p2 == pend
        A("s_add_u32 s28, s28, 1")
        A("s_cmp_lt_u32 s28, 6")
        A(f"s_cbranch_scc1 L_{name}_loop{tag}")
        pend = chunk(isV, 0, False, False, False, pend)
        pend = chunk(isV, 1, False, False, True, pend)
        assert not pend
        stamp(A, 2, st_on)
        A("s_lshl_b32 s52, s23, 6")
        A("s_lshl_b32 s53, s24, 3")
        A("s_add_u32 s52, s52, s53")
        A("s_lshl_b32 s53, s21, 2")
        A("s_add_u32 s52, s52, s53")
        A("s_lshl_b32 s52, s52, 15")
        A(f"s_add_u32 s52, s52, {KV_OFF + (16384 if isV else 0)}")
        A(f"s_lshl_b32 s53, s22, {12 if isV else 13}")
        A("s_add_u32 s52, s52, s53")
        A("s_nop 7")
        A("s_nop 3")
        n = 0
        for rb in range(4):
            for nb in range(4):
                acc = (nb*4 + rb)*16
                T = 32 + (n % 2)*32; n += 1
                for e in range(16): A(f"v_accvgpr_read_b32 v{T+e}, a{acc+e}")
                for e in range(8): A(f"v_cvt_pk_bf16_f32 v{T+16+e}, v{T+2*e}, v{T+2*e+1}")
                for t in range(2):
                    off = rb*32768 + ((t*8 + nb)*1024 if isV else (2*nb + t)*1024)
                    A(f"s_add_u32 s53, s52, {off}")
                    A(f"buffer_store_dwordx4 v[{T+16+4*t}:{T+16+4*t+3}], v27, s[16:19], s53 offen")
        stamp(A, 3, st_on)
        stamp_out(A, 5, st_on, 16)
        A("s_endpgm")
    A.label(f"L_{name}_end")
    A("s_endpgm")
    return A

def kd(name, vgpr, accum, sgpr=102):
    return f""".section .rodata,"a"
.p2align 6
.amdhsa_kernel {name}
  .amdhsa_next_free_vgpr {vgpr}
  .amdhsa_next_free_sgpr {sgpr}
  .amdhsa_accum_offset {accum}
  .amdhsa_group_segment_fixed_size 0
  .amdhsa_kernarg_size 112
  .amdhsa_user_sgpr_count 2
  .amdhsa_user_sgpr_kernarg_segment_ptr 1
  .amdhsa_system_sgpr_workgroup_id_x 1
.end_amdhsa_kernel
"""

if __name__ == "__main__":
    import sys
    A = gen_k1(st_on=len(sys.argv) > 1)
    errs = check(A.L, "k1")
    print("\n".join(errs[:40]), len(errs))
    s = "; @launch kernel=kv_kernel grid=(256,1,1) block=(256,1,1) lds=131072\n" + '.amdgcn_target "amdgcn-amd-amdhsa--gfx950"\n.text\n' + A.text() + kd("kv_kernel", 512, 256)
    open("k1_only.s", "w").write(s)
```

```python
from asmlib import *
from k1 import XN_OFF, KV_OFF, SLAB_OFF, WS_BYTES, srd, stamp, stamp_out, kd
import struct
def f32(x): return hex(struct.unpack("<I", struct.pack("<f", x))[0])
import math

V_LANE=1; V_L16=2; V_L16B=3; V_RD=4; V_LS=5; V_LL=6; V_MX=7; V_T0=8; V_T1=9; V_THR=10; V_T2=11
V_DO=12
V_RB=20
V_RC=24
F=32
S=64; E=80; NM=96; P=112
QS=128; QL=192
OS=0; OL=128
S_WS=4; S_W=8; S_B=12
S_WAVE=20; S_RR=21; S_ROLE=22; S_H=23; S_I=24; S_QB=25
S_PA=26; S_PB=27; S_RBEG=28; S_REND=29; S_KP=30; S_VP=31; S_JK=32; S_JV=33; S_JTK=34; S_JTV=35
S_D=36; S_CNT=37; S_RR8=38; S_W4=39; S_T0=40; S_T1=41; S_T2=42; S_SO=43; S_QBL=44; S_W7=45
NEG = f32(-1e30)
THR = f32(8.0)
D = 5

class VM:
    def __init__(self): self.q = []
    def issue(self, tag): self.q.append(tag)
    def wait(self, tag):
        idx = max((i for i, t in enumerate(self.q) if t == tag), default=-1)
        if idx < 0: return None
        n = len(self.q) - idx - 1
        self.q = self.q[idx+1:]
        assert n <= 63
        return f"s_waitcnt vmcnt({n})"

def halfsum(A, v, t, op="v_add_f32"):
    A(f"v_mov_b32 v{t}, v{v}")
    A("s_nop 1")
    A(f"v_permlane32_swap_b32 v{v}, v{t}")
    A("s_nop 1")
    A(f"{op} v{v}, v{v}, v{t}")

def max_tree(dst, t):
    L = [f"v_max3_f32 v{dst}, v{S}, v{S+1}, v{S+2}", f"v_max3_f32 v{t}, v{S+3}, v{S+4}, v{S+5}"]
    for k in range(6, 14, 4):
        L.append(f"v_max3_f32 v{dst}, v{dst}, v{S+k}, v{S+k+1}")
        L.append(f"v_max3_f32 v{t}, v{t}, v{S+k+2}, v{S+k+3}")
    L.append(f"v_max3_f32 v{dst}, v{dst}, v{S+14}, v{S+15}")
    L.append(f"v_max_f32 v{dst}, v{dst}, v{t}")
    return L

def gen_k2(name="attn_kernel", st_on=False):
    A = Asm()
    N = name
    A(f".p2align 8\n.type {name},@function")
    A.label(name)
    A("s_cmp_ge_u32 s2, 256")
    A(f"s_cbranch_scc1 L_{N}_end")
    stamp(A, 0, st_on)
    A("s_load_dwordx2 s[48:49], s[0:1], 16")
    A("s_load_dwordx2 s[50:51], s[0:1], 40")
    A("s_load_dwordx4 s[52:55], s[0:1], 56")
    A("s_load_dwordx2 s[56:57], s[0:1], 72")
    A("s_load_dwordx2 s[58:59], s[0:1], 104")
    A(f"v_and_b32 v{V_LANE}, 63, v0")
    A(f"v_lshrrev_b32 v{V_T0}, 6, v0")
    A(f"s_and_b32 s{S_T0}, s2, 7")
    A(f"v_readfirstlane_b32 s{S_WAVE}, v{V_T0}")
    A(f"s_lshr_b32 s{S_T1}, s2, 3")
    A(f"s_lshr_b32 s{S_I}, s{S_T1}, 1")
    A(f"s_and_b32 s{S_T1}, s{S_T1}, 1")
    A(f"s_lshl_b32 s{S_H}, s{S_T0}, 1")
    A(f"s_add_u32 s{S_H}, s{S_H}, s{S_T1}")
    A(f"s_and_b32 s{S_RR}, s{S_WAVE}, 1")
    A(f"s_lshr_b32 s{S_ROLE}, s{S_WAVE}, 1")
    A(f"s_lshl_b32 s{S_T0}, s{S_I}, 1")
    A(f"s_sub_u32 s{S_QBL}, 62, s{S_T0}")
    A(f"s_add_u32 s{S_QBL}, s{S_QBL}, s{S_RR}")
    A(f"s_add_u32 s{S_T1}, s{S_T0}, s{S_RR}")
    A(f"s_cmp_eq_u32 s{S_ROLE}, 0")
    A(f"s_cselect_b32 s{S_QB}, s{S_QBL}, s{S_T1}")
    A(f"s_lshl_b32 s{S_RR8}, s{S_RR}, 13")
    A(f"s_lshl_b32 s{S_W4}, s{S_WAVE}, 12")
    A(f"s_mul_i32 s{S_W7}, s{S_WAVE}, 7168")
    A(f"v_lshlrev_b32 v{V_L16}, 4, v{V_LANE}")
    A(f"v_add_u32 v{V_L16B}, 4096, v{V_L16}")
    A("s_waitcnt lgkmcnt(0)")
    srd(A, S_WS, 58, WS_BYTES)
    srd(A, S_W, 48, 448*4096*2)
    srd(A, S_B, 54, 1792*2)
    vm0 = len(A.L)
    A(f"v_lshrrev_b32 v{V_T0}, 5, v{V_LANE}")
    A(f"s_lshl_b32 s{S_T0}, s{S_WAVE}, 3")
    A(f"v_add_u32 v{V_T1}, s{S_T0}, v{V_T0}")
    A(f"v_lshlrev_b32 v{V_T1}, 13, v{V_T1}")
    A(f"s_lshl_b32 s{S_T0}, s{S_H}, 9")
    A(f"v_add_u32 v{V_T1}, s{S_T0}, v{V_T1}")
    A(f"v_lshlrev_b32 v{V_T0}, 2, v{V_T0}")
    A(f"v_and_b32 v{V_T2}, 31, v{V_LANE}")
    A(f"v_xor_b32 v{V_T0}, v{V_T0}, v{V_T2}")
    A(f"v_xor_b32 v{V_T2}, 8, v{V_T0}")
    A(f"v_lshlrev_b32 v{V_T0}, 4, v{V_T0}")
    A(f"v_lshlrev_b32 v{V_T2}, 4, v{V_T2}")
    for c in range(4):
        k = 2*c*8192 - c*1024
        A(f"v_add_u32 v{V_DO+c}, v{V_T1}, v{V_T0 if c % 2 == 0 else V_T2}")
        if k: A(f"v_add_u32 v{V_DO+c}, {k}, v{V_DO+c}")
    WQ_SLOT = [3, 4, 8, 9, 0, 5, 1, 6, 2, 7, 3, 4, 8, 9]
    def wq_dma(c):
        L = [f"s_add_u32 m0, s{S_W4}, {WQ_SLOT[c]*16384}", f"s_mov_b32 s{S_SO}, {c*32*8192}"]
        for j in range(4):
            L.append(f"buffer_load_dwordx4 v{V_DO+j}, s[{S_W}:{S_W+3}], s{S_SO} offen offset:{j*1024} lds ;@W{c}")
        return L
    def xn_loads(k0, k1, sbase, tag="xn"):
        L = []
        for kk in range(k0, k1):
            if kk % 4 == 0 or kk == k0: L.append(f"s_add_u32 s{S_T2}, s{sbase}, {(kk//4)*4096}")
            L.append(f"buffer_load_dwordx4 a[{4*kk}:{4*kk+3}], v{V_L16}, s[{S_WS}:{S_WS+3}], s{S_T2} offen offset:{(kk % 4)*1024} ;@{tag}{kk}")
        return L
    A(f"s_mul_i32 s{S_T1}, s{S_QB}, {28*1024}")
    if XN_OFF: A(f"s_add_u32 s{S_T1}, s{S_T1}, {XN_OFF}")
    for i in wq_dma(0): A(i)
    for i in xn_loads(0, 4, S_T1): A(i)
    for i in wq_dma(1): A(i)
    for i in xn_loads(4, 28, S_T1): A(i)
    for c in range(2, 8):
        for i in wq_dma(c): A(i)
    def read_bases(rowstride, hmul, nsets, xshift):
        A(f"v_lshrrev_b32 v{V_T0}, 2, v{V_LANE}")
        A(f"v_and_b32 v{V_T0}, 3, v{V_T0}")
        A(f"v_lshrrev_b32 v{V_T1}, 5, v{V_LANE}")
        A(f"v_mad_u32_u24 v{V_T1}, v{V_T1}, {hmul}, v{V_T0}")
        A(f"v_mul_u32_u24 v{V_T1}, {rowstride}, v{V_T1}")
        A(f"v_lshrrev_b32 v{V_T2}, 4, v{V_LANE}")
        A(f"v_and_b32 v{V_T2}, 1, v{V_T2}")
        A(f"v_lshl_add_u32 v{V_T1}, v{V_T2}, 5, v{V_T1}")
        A(f"v_and_b32 v{V_T2}, 3, v{V_LANE}")
        A(f"v_lshl_add_u32 v{V_T1}, v{V_T2}, 3, v{V_T1}")
        if xshift: A(f"v_lshrrev_b32 v{V_T0}, {xshift}, v{V_T0}")
        for p in range(nsets):
            A(f"v_xor_b32 v{V_T2}, {p}, v{V_T0}")
            A(f"v_lshl_add_u32 v{V_RB+p}, v{V_T2}, 6, v{V_T1}")
    read_bases(512, 8, 4, 0)
    A(f"v_lshrrev_b32 v{V_T0}, 5, v{V_LANE}")
    A(f"v_lshlrev_b32 v{V_T0}, 2, v{V_T0}")
    A(f"v_and_b32 v{V_THR}, 31, v{V_LANE}")
    A(f"v_sub_u32 v{V_THR}, v{V_THR}, v{V_T0}")
    A(f"v_mov_b32 v{V_LS}, 0")
    A(f"v_mov_b32 v{V_LL}, 0")
    for r in range(16): A(f"v_mov_b32 v{NM+r}, 0")
    for r in range(112, 256): A(f"v_accvgpr_write_b32 a{r}, 0")
    A(f"s_lshl_b32 s{S_T0}, s{S_H}, 21")
    A(f"s_add_u32 s{S_T0}, s{S_T0}, {KV_OFF}")
    A(f"s_add_u32 s{S_T0}, s{S_T0}, s{S_RR8}")
    A(f"s_mov_b32 s{S_KP}, s{S_T0}")
    A(f"s_add_u32 s{S_VP}, s{S_T0}, 16384")
    A(f"s_lshl_b32 s{S_T1}, s{S_I}, 16")
    A(f"s_add_u32 s{S_T1}, s{S_T1}, 65536")
    A(f"s_cmp_eq_u32 s{S_ROLE}, 0")
    A(f"s_cselect_b32 s{S_T1}, 1, s{S_T1}")
    A(f"s_add_u32 s{S_JK}, s{S_KP}, s{S_T1}")
    A(f"s_add_u32 s{S_JV}, s{S_VP}, s{S_T1}")
    A(f"s_add_u32 s{S_JTK}, s{S_KP}, {33*32768}")
    A(f"s_add_u32 s{S_JTV}, s{S_VP}, {33*32768}")
    A(f"s_mul_i32 s{S_RBEG}, s{S_ROLE}, {5*16384}")
    A(f"s_add_u32 s{S_REND}, s{S_RBEG}, {5*16384}")
    def kv_dma(isV, m0expr):
        p, j, jt = (S_VP, S_JV, S_JTV) if isV else (S_KP, S_JK, S_JTK)
        L = [[m0expr, "s_nop 0", f"buffer_load_dwordx4 v{V_L16}, s[{S_WS}:{S_WS+3}], s{p} offen lds"]]
        for k in range(1, 4): L.append(f"buffer_load_dwordx4 v{V_L16}, s[{S_WS}:{S_WS+3}], s{p} offen offset:{k*1024} lds")
        L.append(["s_add_u32 m0, m0, 4096", "s_nop 0", f"buffer_load_dwordx4 v{V_L16B}, s[{S_WS}:{S_WS+3}], s{p} offen lds"])
        for k in range(1, 4): L.append(f"buffer_load_dwordx4 v{V_L16B}, s[{S_WS}:{S_WS+3}], s{p} offen offset:{k*1024} lds")
        L.append([f"s_add_u32 s{p}, s{p}, 32768", f"s_cmp_eq_u32 s{p}, s{j}", f"s_cselect_b32 s{p}, s{jt}, s{p}"])
        return L
    A(f"s_add_u32 s{S_T1}, s{S_RBEG}, s{S_RR8}")
    def kv_item_static(n):
        isV = (n == 2)
        L = kv_dma(isV, f"s_add_u32 m0, s{S_T1}, {n*16384}")
        return L

    def stream_gemm(nchunks, per, frag_reads, mfma, slot_of, slot_bytes, nbase, at_barrier, wait_tag, pre_mfma=None, extra=None):
        n = nchunks*per
        M = [mfma(m // per, m % per, vr(F + 4*(m % 8), 4)) for m in range(n)]
        W = Weave(M)
        def chunk_open(c):
            L = []
            L.append("WAITVM " + wait_tag(c))
            L.append("s_barrier")
            rc = V_RC + 4*(c % 2)
            for p in range(nbase): L.append(f"v_add_u32 v{rc+p}, {slot_of(c)*slot_bytes}, v{V_RB+p}")
            return L
        def rd(m):
            c, j = m // per, m % per
            f = F + 4*(m % 8)
            r0, r1 = frag_reads(c, j, V_RC + 4*(c % 2))
            return [r0.format(vr(f, 2)), r1.format(vr(f+2, 2))]
        for i in chunk_open(0): A(i)
        for i in at_barrier(0):
            for ii in (i if isinstance(i, list) else [i]): A(ii)
        for m in range(D):
            for i in rd(m): A(i)
        for m in range(n):
            left = min(D - 1, n - 1 - m)
            W.pre[m].append(f"s_waitcnt lgkmcnt({2*left})")
            if pre_mfma:
                W.pre[m].extend(pre_mfma(m // per, m % per))
            m2 = m + D
            if m2 < n:
                if m2 % per == 0:
                    c = m2 // per
                    W.post[m].extend(chunk_open(c))
                    ab = at_barrier(c)
                    if ab: W.spread(ab, m + 1, min(m + 1 + max(len(ab), 1), n))
                W.post[m].extend(rd(m2))
        if extra: extra(W)
        W.emit(A)

    stamp(A, 1, st_on)
    if st_on: A("s_waitcnt lgkmcnt(0)")
    def q_reads(c, j, rc):
        ks, nb = j // 8, j % 8
        o = (nb >> 2)*256 + 16*ks*512
        return (f"ds_read_b64_tr_b16 {{0}}, v{rc + (nb & 3)} offset:{o}", f"ds_read_b64_tr_b16 {{0}}, v{rc + (nb & 3)} offset:{o + 4*512}")
    def q_mfma(c, j, fr):
        ks, nb = j // 8, j % 8
        kk = 2*c + ks
        acc = vr(QS + 16*nb, 16)
        return f"v_mfma_f32_32x32x16_bf16 {acc}, {fr}, {ar(4*kk, 4)}, {'0' if kk == 0 else acc}"
    def q_bar(c):
        L = []
        if c in (0, 1): L += [[x] for x in wq_dma(8 + c)]
        if 2 <= c <= 5: L += [[x] for x in wq_dma(8 + c)]
        if c in (7, 9, 11): L += kv_item_static((c - 7)//2)
        return L
    def q_pre(c, j):
        if j % 8 == 0:
            return [f"WAITVM xn{2*c + j//8}"]
        return []
    def q_extra(W):
        for kk in range(26):
            for e in range(4): W.post[(kk + 2)*8 + 2*e].append(f"v_accvgpr_write_b32 a{4*kk+e}, 0")
    stream_gemm(14, 16, q_reads, q_mfma, lambda c: WQ_SLOT[c], 16384, 4, q_bar, lambda c: f"W{c}", q_pre, q_extra)
    left = A.resolve_vm(vm0); assert len(left) <= 24, left
    for r in range(104, 112): A(f"v_accvgpr_write_b32 a{r}, 0")
    A("s_barrier")
    A(f"s_mov_b32 s{S_T0}, {f32(math.log2(math.e)/16.0)}")
    A("s_nop 3")
    A(f"s_cmp_eq_u32 s{S_ROLE}, 0")
    A(f"s_cbranch_scc0 L_{N}_qY")
    for p in range(63, -1, -1):
        A(f"v_mul_f32 v{QS+2*p}, s{S_T0}, v{QS+2*p}")
        A(f"v_mul_f32 v{QS+2*p+1}, s{S_T0}, v{QS+2*p+1}")
        A(f"v_cvt_pk_bf16_f32 v{QL+p}, v{QS+2*p}, v{QS+2*p+1}")
    A(f"s_mul_i32 s{S_T2}, s{S_RR}, {5*16384}")
    A(f"s_add_u32 s{S_T2}, s{S_T2}, {4*16384}")
    A(f"v_add_u32 v{V_RD}, s{S_T2}, v{V_L16}")
    for k in range(16): A(f"ds_write_b128 v{V_RD}, {vr(QL+4*k, 4)} offset:{k*1024}")
    A("s_waitcnt lgkmcnt(0)")
    A("s_barrier")
    A(f"s_mov_b32 s{S_D}, s{S_QBL}")
    A(f"s_branch L_{N}_qjoin")
    A.label(f"L_{N}_qY")
    for p in range(64):
        A(f"v_mul_f32 v{QS+2*p}, s{S_T0}, v{QS+2*p}")
        A(f"v_mul_f32 v{QS+2*p+1}, s{S_T0}, v{QS+2*p+1}")
        A(f"v_cvt_pk_bf16_f32 v{QS+p}, v{QS+2*p}, v{QS+2*p+1}")
    A(f"s_mul_i32 s{S_T2}, s{S_RR}, {5*16384}")
    A(f"s_add_u32 s{S_T2}, s{S_T2}, {4*16384}")
    A(f"v_add_u32 v{V_RD}, s{S_T2}, v{V_L16}")
    A("s_barrier")
    for k in range(16): A(f"ds_read_b128 {vr(QL+4*k, 4)}, v{V_RD} offset:{k*1024}")
    A("s_waitcnt lgkmcnt(0)")
    A(f"s_mov_b32 s{S_D}, s{S_QB}")
    A.label(f"L_{N}_qjoin")
    stamp(A, 2, st_on)
    if st_on: A("s_waitcnt lgkmcnt(0)")

    def nxt(d, s):
        return [f"s_add_u32 s{d}, s{s}, 16384", f"s_cmp_eq_u32 s{d}, s{S_REND}", f"s_cselect_b32 s{d}, s{S_RBEG}, s{d}"]
    def bar_open(a, b, isV_load):
        imm = ["s_waitcnt vmcnt(16)", "s_barrier", f"s_add_u32 s{S_T2}, s{a}, s{S_RR8}"] + nxt(a, b) + [f"v_add_u32 v{V_RD}, s{a}, v{V_L16}"]
        return imm, kv_dma(isV_load, f"s_mov_b32 m0, s{S_T2}")
    def frd(m16):
        return f"ds_read_b128 {vr(F + 4*(m16 % 8), 4)}, v{V_RD} offset:{m16*1024}"
    def half(M, a, b, isV_load, fill, nxt_reads=True):
        W = Weave(M)
        for m in range(16):
            left = D - 1 if nxt_reads else min(D - 1, 15 - m)
            W.pre[m].append(f"s_waitcnt lgkmcnt({left})")
            m2 = m + D
            if m2 == 16 and nxt_reads:
                imm, dma = bar_open(a, b, isV_load)
                W.post[m].extend(imm)
            if m2 < 16 or nxt_reads:
                W.post[m].append(frd(m2 % 16))
        fill(W)
        return W
    def qk(q):
        return [f"v_mfma_f32_32x32x16_bf16 {vr(S,16)}, {vr(F+4*(m%8),4)}, {vr(q+4*m,4)}, {vr(NM,16) if m == 0 else vr(S,16)}" for m in range(16)]
    def pv(o):
        return [f"v_mfma_f32_32x32x16_bf16 {ar(o+16*(m%8),16)}, {vr(F+4*(m%8),4)}, {vr(P+4*(m//8),4)}, {ar(o+16*(m%8),16)}" for m in range(16)]
    def sumcvt(l):
        L = []
        for k in range(8):
            L.append(f"v_add_f32 v{l}, v{l}, v{E+2*k}")
            L.append(f"v_cvt_pk_bf16_f32 v{P+k}, v{E+2*k}, v{E+2*k+1}")
            L.append(f"v_add_f32 v{l}, v{l}, v{E+2*k+1}")
        return L
    def expmax():
        L = []
        mt = max_tree(V_MX, V_T0)
        for k in range(8):
            L.append(f"v_exp_f32 v{E+2*k}, v{S+2*k}")
            L.append(mt[k])
            L.append(f"v_exp_f32 v{E+2*k+1}, v{S+2*k+1}")
        return L
    dmaK = kv_dma(False, f"s_mov_b32 m0, s{S_T2}")
    dmaV = kv_dma(True, f"s_mov_b32 m0, s{S_T2}")
    A(f"s_add_u32 s{S_PA}, s{S_RBEG}, {3*16384}")
    A(f"s_add_u32 s{S_PB}, s{S_RBEG}, {4*16384}")
    imm, dma = bar_open(S_PA, S_PB, False)
    for i in imm: A(i)
    for m in range(D): A(frd(m))
    def body(q, o, l, slow, ret, resetnm=False):
        def f1(W):
            W.spread(dmaV, 0, 9)
            W.spread(sumcvt(l), 0, 14)
        if resetnm:
            for r in range(16): A(f"v_mov_b32 v{NM+r}, 0")
            A(f"s_sub_u32 s{S_D}, s{S_QBL}, 32")
        half(qk(q), S_PA, S_PB, False, f1).emit(A)
        def f2(W):
            W.spread(dmaK, 0, 9)
            W.spread(expmax(), 2, 15)
            W.post[1].append(f"s_sub_i32 s{S_D}, s{S_D}, 1")
        half(pv(o), S_PB, S_PA, True, f2).emit(A)
        if slow is not None:
            A(f"v_cmp_lt_f32 vcc, {THR}, v{V_MX}")
            A(f"s_cmp_le_i32 s{S_D}, 0")
            A(f"s_cbranch_scc1 {slow}")
            A(f"s_cbranch_vccnz {slow}")
            A.label(ret)
    def slowpath(lab, ret, o, l, first):
        A.label(lab)
        A(f"s_cmp_le_i32 s{S_D}, 0")
        A(f"s_cbranch_scc0 {lab}_nomask")
        A(f"s_lshl_b32 s{S_T0}, s{S_D}, 5")
        A(f"v_add_u32 v{V_T1}, s{S_T0}, v{V_THR}")
        A(f"v_mov_b32 v{V_T2}, {NEG}")
        for r in range(16):
            A(f"v_cmp_gt_i32 vcc, {8*(r//4) + (r % 4)}, v{V_T1}")
            A("s_nop 1")
            A(f"v_cndmask_b32 v{S+r}, v{S+r}, v{V_T2}, vcc")
        A.label(f"{lab}_nomask")
        for i in max_tree(V_MX, V_T0): A(i)
        halfsum(A, V_MX, V_T0, "v_max_f32")
        if not first:
            A(f"v_cmp_lt_f32 vcc, {THR}, v{V_MX}")
            A(f"s_cbranch_vccz {lab}_exp")
            A(f"v_max_f32 v{V_MX}, 0, v{V_MX}")
            A(f"v_exp_f32 v{V_T1}, -v{V_MX}")
            A("s_nop 0")
            A(f"v_mul_f32 v{l}, v{l}, v{V_T1}")
            for r in range(0, 128, 4):
                for e in range(4): A(f"v_accvgpr_read_b32 v{E+e}, a{o+r+e}")
                for e in range(4): A(f"v_mul_f32 v{E+e}, v{E+e}, v{V_T1}")
                for e in range(4): A(f"v_accvgpr_write_b32 a{o+r+e}, v{E+e}")
        for r in range(16): A(f"v_sub_f32 v{S+r}, v{S+r}, v{V_MX}")
        for r in range(16): A(f"v_sub_f32 v{NM+r}, v{NM+r}, v{V_MX}")
        if not first: A.label(f"{lab}_exp")
        for r in range(16): A(f"v_exp_f32 v{E+r}, v{S+r}")
        A("s_nop 1")
        A(f"s_branch {ret}")
    A(f"s_cmp_eq_u32 s{S_ROLE}, 0")
    A(f"s_cbranch_scc0 L_{N}_Ystart")
    half(qk(QL), S_PB, S_PA, True, lambda W: W.spread(dmaK, 0, 9)).emit(A)
    A(f"s_mov_b32 s{S_CNT}, 32")
    A("s_nop 7\ns_nop 3")
    A(f"s_branch L_{N}_spF_B")
    A.label(f"L_{N}_Ystart")
    half(qk(QS), S_PB, S_PA, True, lambda W: W.spread(dmaK, 0, 9)).emit(A)
    A(f"s_lshl_b32 s{S_CNT}, s{S_I}, 1")
    A(f"s_add_u32 s{S_CNT}, s{S_CNT}, 1")
    A("s_nop 7\ns_nop 3")
    A(f"s_branch L_{N}_spF_A")
    A.label(f"L_{N}_loopA")
    body(QS, OS, V_LS, f"L_{N}_spA", f"L_{N}_retA")
    A(f"s_sub_u32 s{S_CNT}, s{S_CNT}, 1")
    A(f"s_cmp_lg_u32 s{S_CNT}, 0")
    A(f"s_cbranch_scc1 L_{N}_loopA")
    body(QL, OS, V_LS, None, None, resetnm=True)
    A(f"s_lshl_b32 s{S_T0}, s{S_I}, 1")
    A(f"s_sub_u32 s{S_CNT}, 30, s{S_T0}")
    A(f"s_branch L_{N}_spF_B")
    A.label(f"L_{N}_loopB")
    body(QL, OL, V_LL, f"L_{N}_spB", f"L_{N}_retB")
    A(f"s_sub_u32 s{S_CNT}, s{S_CNT}, 1")
    A.label(f"L_{N}_loopB_entry")
    A(f"s_cmp_lg_u32 s{S_CNT}, 0")
    A(f"s_cbranch_scc1 L_{N}_loopB")
    for i in sumcvt(V_LL): A(i)
    A("s_waitcnt vmcnt(0) lgkmcnt(0)")
    A("s_barrier")
    for i in nxt(S_PA, S_PB): A(i)
    A(f"v_add_u32 v{V_RD}, s{S_PA}, v{V_L16}")
    for m in range(D): A(frd(m))
    half(pv(OL), None, None, None, lambda W: None, nxt_reads=False).emit(A)
    A(f"s_branch L_{N}_combine")
    slowpath(f"L_{N}_spA", f"L_{N}_retA", OS, V_LS, False)
    slowpath(f"L_{N}_spB", f"L_{N}_retB", OL, V_LL, False)
    slowpath(f"L_{N}_spF_A", f"L_{N}_loopA", OS, V_LS, True)
    slowpath(f"L_{N}_spF_B", f"L_{N}_loopB_entry", OL, V_LL, True)

    A.label(f"L_{N}_combine")
    stamp(A, 3, st_on)
    A("s_waitcnt lgkmcnt(0)")
    A("s_barrier")
    halfsum(A, V_LL, V_T0)
    halfsum(A, V_LS, V_T0)
    A(f"s_lshl_b32 s{S_T0}, s{S_RR}, 15")
    A(f"v_add_u32 v{V_RD}, s{S_T0}, v{V_L16}")
    A(f"s_lshl_b32 s{S_T0}, s{S_RR}, 9")
    A(f"s_add_u32 s{S_T0}, s{S_T0}, 65536")
    A(f"v_lshlrev_b32 v{V_T2}, 3, v{V_LANE}")
    A(f"v_add_u32 v{V_T2}, s{S_T0}, v{V_T2}")
    A(f"s_cmp_eq_u32 s{S_ROLE}, 0")
    A(f"s_cbranch_scc1 L_{N}_cX")
    A(f"v_mov_b32 v{V_T0}, v{NM}")
    A(f"v_mov_b32 v{V_T1}, v{V_LL}")
    A(f"ds_write_b64 v{V_T2}, v[{V_T0}:{V_T1}]")
    for k in range(32): A(f"ds_write_b128 v{V_RD}, {ar(OL+4*k, 4)} offset:{k*1024}")
    A("s_waitcnt lgkmcnt(0)")
    A("s_barrier")
    A(f"v_rcp_f32 v{V_T0}, v{V_LS}")
    for k in range(32):
        T = F + 4*(k % 4)
        for e in range(4): A(f"v_accvgpr_read_b32 v{T+e}, a{OS+4*k+e}")
        for e in range(4): A(f"v_mul_f32 v{T+e}, v{T+e}, v{V_T0}")
        A(f"v_cvt_pk_bf16_f32 v{QL+2*k}, v{T}, v{T+1}")
        A(f"v_cvt_pk_bf16_f32 v{QL+2*k+1}, v{T+2}, v{T+3}")
    A(f"s_branch L_{N}_cjoin")
    A.label(f"L_{N}_cX")
    A("s_barrier")
    A(f"ds_read_b64 v[{V_T0}:{V_T1}], v{V_T2}")
    for k in range(8): A(f"ds_read_b128 {vr(QS+4*k, 4)}, v{V_RD} offset:{k*1024}")
    A("s_waitcnt lgkmcnt(8)")
    A(f"v_min_f32 v{V_MX}, v{NM}, v{V_T0}")
    A(f"v_sub_f32 v{V_T2}, v{V_MX}, v{NM}")
    A(f"v_sub_f32 v{V_T0}, v{V_MX}, v{V_T0}")
    A(f"v_exp_f32 v{V_T2}, v{V_T2}")
    A(f"v_exp_f32 v{V_T0}, v{V_T0}")
    A("s_nop 0")
    A(f"v_mul_f32 v{V_MX}, v{V_T2}, v{V_LL}")
    A(f"v_fmac_f32 v{V_MX}, v{V_T0}, v{V_T1}")
    A(f"v_rcp_f32 v{V_MX}, v{V_MX}")
    A("s_nop 0")
    A(f"v_mul_f32 v{V_T2}, v{V_T2}, v{V_MX}")
    A(f"v_mul_f32 v{V_T0}, v{V_T0}, v{V_MX}")
    for k in range(32):
        T = F + 4*(k % 4); Y = QS + 4*(k % 16)
        for e in range(4): A(f"v_accvgpr_read_b32 v{T+e}, a{OL+4*k+e}")
        A(f"s_waitcnt lgkmcnt({min(7, 31-k)})")
        for e in range(4): A(f"v_mul_f32 v{T+e}, v{T+e}, v{V_T2}")
        for e in range(4): A(f"v_fmac_f32 v{T+e}, v{Y+e}, v{V_T0}")
        if k + 8 < 32: A(f"ds_read_b128 {vr(QS+4*((k+8) % 16), 4)}, v{V_RD} offset:{(k+8)*1024}")
        A(f"v_cvt_pk_bf16_f32 v{QL+2*k}, v{T}, v{T+1}")
        A(f"v_cvt_pk_bf16_f32 v{QL+2*k+1}, v{T+2}, v{T+3}")
    A.label(f"L_{N}_cjoin")
    A("s_barrier")
    vm0 = len(A.L)
    A(f"s_cmp_ge_u32 s{S_H}, 14")
    A(f"s_cbranch_scc1 L_{N}_noH")
    srd(A, S_W, 52, 448*1792*2)
    A(f"v_lshrrev_b32 v{V_T0}, 4, v{V_LANE}")
    A(f"s_lshl_b32 s{S_T0}, s{S_WAVE}, 4")
    A(f"v_add_u32 v{V_T1}, s{S_T0}, v{V_T0}")
    A(f"v_mul_u32_u24 v{V_T1}, 3584, v{V_T1}")
    A(f"s_lshl_b32 s{S_T0}, s{S_H}, 8")
    A(f"v_add_u32 v{V_T1}, s{S_T0}, v{V_T1}")
    A(f"v_lshlrev_b32 v{V_T0}, 2, v{V_T0}")
    A(f"v_and_b32 v{V_T2}, 15, v{V_LANE}")
    A(f"v_xor_b32 v{V_T0}, v{V_T0}, v{V_T2}")
    A(f"v_lshl_add_u32 v{V_T1}, v{V_T0}, 4, v{V_T1}")
    for c in range(4):
        k = 4*c*3584 - c*1024
        A(f"v_add_u32 v{V_DO+c}, {k}, v{V_T1}")
    def w1_dma(c):
        L = [f"s_add_u32 m0, s{S_W4}, {c*16384}", f"s_mov_b32 s{S_SO}, {c*64*3584}"]
        for j in range(4):
            L.append(f"buffer_load_dwordx4 v{V_DO+j}, s[{S_W}:{S_W+3}], s{S_SO} offen offset:{j*1024} lds ;@H{c}")
        return L
    A(f"v_lshrrev_b32 v{V_T0}, 5, v{V_LANE}")
    A(f"v_lshlrev_b32 v{V_T0}, 3, v{V_T0}")
    A(f"s_lshl_b32 s{S_T0}, s{S_H}, 8")
    for g in range(16):
        A(f"buffer_load_dwordx2 v[{S+2*g}:{S+2*g+1}], v{V_T0}, s[{S_B}:{S_B+3}], s{S_T0} offen offset:{g*16} ;@bias")
    A(f"s_mul_i32 s{S_T1}, s{S_QB}, {28*1024}")
    if XN_OFF: A(f"s_add_u32 s{S_T1}, s{S_T1}, {XN_OFF}")
    for i in w1_dma(0): A(i)
    for i in xn_loads(0, 28, S_T1, "xh"): A(i)
    for c in range(1, 4):
        for i in w1_dma(c): A(i)
    read_bases(256, 8, 4, 0)
    A("WAITVM bias")
    for g in range(16):
        for e in range(2):
            A(f"v_lshlrev_b32 v{QS+4*g+2*e}, 16, v{S+2*g+e}")
            A(f"v_and_b32 v{QS+4*g+2*e+1}, 0xffff0000, v{S+2*g+e}")
    def h_reads(c, j, rc):
        ks, nb = j // 4, j % 4
        o = 16*ks*256
        return (f"ds_read_b64_tr_b16 {{0}}, v{rc + nb} offset:{o}", f"ds_read_b64_tr_b16 {{0}}, v{rc + nb} offset:{o + 4*256}")
    def h_mfma(c, j, fr):
        ks, nb = j // 4, j % 4
        kk = 4*c + ks
        acc = vr(QS + 16*nb, 16)
        return f"v_mfma_f32_32x32x16_bf16 {acc}, {fr}, {ar(4*kk, 4)}, {acc}"
    def h_bar(c):
        return [[x] for x in w1_dma(4 + c)] if c < 3 else []
    def h_pre(c, j):
        if j % 4 == 0:
            return [f"WAITVM xh{4*c + j//4}"]
        return []
    stream_gemm(7, 16, h_reads, h_mfma, lambda c: c, 16384, 4, h_bar, lambda c: f"H{c}", h_pre)
    A.resolve_vm(vm0)
    A("s_nop 7\ns_nop 3")
    for p in range(32):
        for e in range(2):
            A(f"v_max_f32 v{QS+2*p+e}, 0, v{QS+2*p+e}")
            A(f"v_mul_f32 v{QS+2*p+e}, v{QS+2*p+e}, v{QS+2*p+e}")
        A(f"v_cvt_pk_bf16_f32 v{S+p}, v{QS+2*p}, v{QS+2*p+1}")
    A("s_barrier")
    A.label(f"L_{N}_noH")
    stamp(A, 4, st_on)
    if st_on: A("s_waitcnt lgkmcnt(0)")
    for c in range(7):
        A(f"v_add_u32 v{V_T0}, {c*64}, v{V_LANE}")
        A(f"v_mul_u32_u24 v{V_T0}, 1171, v{V_T0}")
        A(f"v_lshrrev_b32 v{V_T0}, 17, v{V_T0}")
        A(f"v_and_b32 v{V_T0}, 1, v{V_T0}")
        A(f"v_lshlrev_b32 v{V_T0}, 6, v{V_T0}")
        A(f"v_xor_b32 v{V_DO+c}, v{V_T0}, v{V_L16 if c < 4 else V_L16B}")
    read_bases(896, 4, 2, 1)
    srd(A, S_W, 50, 4096*448*2)
    srd(A, S_B, 56, 1792*448*2)
    A(f"s_mul_i32 s{S_T0}, s{S_H}, {256*896}")
    A(f"s_add_u32 s{S_T0}, s{S_T0}, s{S_W7}")
    A(f"s_mul_i32 s{S_T1}, s{S_H}, {128*896}")
    A(f"s_add_u32 s{S_T1}, s{S_T1}, s{S_W7}")
    def wo_dma(c):
        sd, sb, cc = (S_W, S_T0, c) if c < 8 else (S_B, S_T1, c - 8)
        L = [[f"s_add_u32 m0, s{S_W7}, {(c % 5)*28672}", f"s_add_u32 s{S_SO}, s{sb}, {cc*28672}"]]
        for j in range(7):
            g = []
            if j == 4: g += ["s_add_u32 m0, m0, 4096", "s_nop 0"]
            g.append(f"buffer_load_dwordx4 v{V_DO+j}, s[{sd}:{sd+3}], s{S_SO} offen offset:{(j % 4)*1024} lds ;@O{c}")
            L.append(g)
        return L
    def o_reads(c, j, rc):
        ks, mb = j // 14, j % 14
        o = (mb >> 1)*128 + 16*ks*896
        return (f"ds_read_b64_tr_b16 {{0}}, v{rc + (mb & 1)} offset:{o}", f"ds_read_b64_tr_b16 {{0}}, v{rc + (mb & 1)} offset:{o + 8*896}")
    def o_mfma(c, j, fr):
        ks, mb = j // 14, j % 14
        kk = 2*c + ks
        b = vr(QL + 4*kk, 4) if kk < 16 else vr(S + 4*(kk - 16), 4)
        acc = ar(16*mb, 16)
        return f"v_mfma_f32_32x32x16_bf16 {acc}, {fr}, {b}, {'0' if kk == 0 else acc}"
    for nch, lab in ((12, "o12"), (8, "o8")):
        vm0 = len(A.L)
        if nch == 12:
            A(f"s_cmp_ge_u32 s{S_H}, 14")
            A(f"s_cbranch_scc1 L_{N}_o8")
        else:
            A.label(f"L_{N}_o8")
        for c in range(5):
            for g in wo_dma(c):
                for i in g: A(i)
        def o_bar(c):
            return wo_dma(c + 3) if (c >= 2 and c + 3 < nch) else []
        stream_gemm(nch, 28, o_reads, o_mfma, lambda c: c % 5, 28672, 2, o_bar, lambda c: f"O{c}")
        A.resolve_vm(vm0)
        if nch == 12: A(f"s_branch L_{N}_store")
    A.label(f"L_{N}_store")
    stamp(A, 5, st_on)
    A(f"s_mul_i32 s{S_T0}, s{S_QB}, {28*16*1024}")
    A(f"s_lshl_b32 s{S_T1}, s{S_H}, 10")
    A(f"s_add_u32 s{S_T0}, s{S_T0}, s{S_T1}")
    A(f"s_add_u32 s{S_T0}, s{S_T0}, {SLAB_OFF}")
    A("s_nop 7\ns_nop 3")
    for mb in range(14):
        T = QS + (mb % 2)*32
        for e in range(16): A(f"v_accvgpr_read_b32 v{T+e}, a{16*mb+e}")
        for e in range(8): A(f"v_cvt_pk_bf16_f32 v{T+16+e}, v{T+2*e}, v{T+2*e+1}")
        for t in range(2):
            A(f"s_add_u32 s{S_T1}, s{S_T0}, {(mb*2+t)*16384}")
            A(f"buffer_store_dwordx4 v[{T+16+4*t}:{T+16+4*t+3}], v{V_L16}, s[{S_WS}:{S_WS+3}], s{S_T1} offen")
    stamp_out(A, 7, st_on, S_WS, 0x10000)
    A.label(f"L_{N}_end")
    A("s_endpgm")
    return A

def gen_k3(name="red_kernel"):
    A = Asm()
    A(f".p2align 8\n.type {name},@function")
    A.label(name)
    A("s_cmp_ge_u32 s2, 448")
    A(f"s_cbranch_scc1 L_{name}_end")
    A("s_load_dwordx2 s[20:21], s[0:1], 0")
    A("s_load_dwordx4 s[24:27], s[0:1], 80")
    A("s_load_dwordx2 s[28:29], s[0:1], 104")
    A("v_and_b32 v1, 63, v0")
    A("v_lshrrev_b32 v2, 6, v0")
    A("s_lshl_b32 s3, s2, 2")
    A("v_readfirstlane_b32 s30, v2")
    A("v_lshlrev_b32 v2, 4, v1")
    A("s_add_u32 s30, s30, s3")
    A("s_mul_i32 s31, s30, 2341")
    A("s_lshr_b32 s31, s31, 16")
    A("s_mul_i32 s32, s31, 28")
    A("s_sub_u32 s32, s30, s32")
    A("s_waitcnt lgkmcnt(0)")
    srd(A, 4, 28, WS_BYTES)
    srd(A, 8, 20, 2048*448*2)
    srd(A, 12, 24, 448*2)
    srd(A, 16, 26, 2048*448*2)
    A("s_lshl_b32 s33, s30, 14")
    A(f"s_add_u32 s33, s33, {SLAB_OFF}")
    for h in range(16):
        if h % 4 == 0 and h: A("s_add_u32 s33, s33, 4096")
        A(f"buffer_load_dwordx4 v[{8+4*h}:{8+4*h+3}], v2, s[4:7], s33 offen offset:{(h % 4)*1024}")
    A("v_and_b32 v3, 31, v1")
    A("v_mul_u32_u24 v3, 896, v3")
    A("v_lshrrev_b32 v4, 5, v1")
    A("v_lshlrev_b32 v4, 3, v4")
    A("v_add_u32 v3, v3, v4")
    A("s_mul_i32 s34, s31, 32*896")
    A("s_lshl_b32 s35, s32, 5")
    A("s_add_u32 s34, s34, s35")
    A("buffer_load_dwordx2 v[72:73], v3, s[8:11], s34 offen")
    A("buffer_load_dwordx2 v[74:75], v3, s[8:11], s34 offen offset:16")
    A("buffer_load_dwordx2 v[76:77], v4, s[12:15], s35 offen")
    A("buffer_load_dwordx2 v[78:79], v4, s[12:15], s35 offen offset:16")
    for h in range(18):
        A(f"s_waitcnt vmcnt({19-h if h < 16 else (2 if h == 16 else 0)})")
        for e in range(4):
            src = 8 + 4*h + e
            if h == 0:
                A(f"v_lshlrev_b32 v{80+2*e}, 16, v{src}")
                A(f"v_and_b32 v{81+2*e}, 0xffff0000, v{src}")
            else:
                A(f"v_lshlrev_b32 v5, 16, v{src}")
                A(f"v_and_b32 v6, 0xffff0000, v{src}")
                A(f"v_add_f32 v{80+2*e}, v{80+2*e}, v5")
                A(f"v_add_f32 v{81+2*e}, v{81+2*e}, v6")
    for e in range(4): A(f"v_cvt_pk_bf16_f32 v{8+e}, v{80+2*e}, v{81+2*e}")
    A("buffer_store_dwordx2 v[8:9], v3, s[16:19], s34 offen")
    A("buffer_store_dwordx2 v[10:11], v3, s[16:19], s34 offen offset:16")
    A.label(f"L_{name}_end")
    A("s_endpgm")
    return A

if __name__ == "__main__":
    import sys
    from k1 import gen_k1
    st = len(sys.argv) > 1 and sys.argv[1] == "1"
    out = sys.argv[2] if len(sys.argv) > 2 else "full.s"
    A1 = gen_k1(st_on=st); A2 = gen_k2(st_on=st); A3 = gen_k3()
    for a, n in ((A1, "k1"), (A2, "k2"), (A3, "k3")):
        errs = check(a.L, n)
        print("\n".join(errs[:40])); print(n, "hazard errs:", len(errs), "lines", len(a.L))
    hdr = open("parallel_sum__compressed_kv_cla__dense_activation_squared_relu__prompt.s.ref").read().split("; Override")[0]
    s = hdr + "; @launch kernel=kv_kernel grid=(256,1,1) block=(256,1,1) lds=131072\n" \
        + "; @launch kernel=attn_kernel grid=(256,1,1) block=(256,1,1) lds=163840\n" \
        + "; @launch kernel=red_kernel grid=(448,1,1) block=(256,1,1) lds=0\n" \
        + '.amdgcn_target "amdgcn-amd-amdhsa--gfx950"\n.text\n' + A1.text() + A2.text() + A3.text() \
        + kd("kv_kernel", 512, 256) + kd("attn_kernel", 512, 256) + kd("red_kernel", 88, 88)
    open(out, "w").write(s)
```

```python
import re

class Asm:
    def __init__(self):
        self.L = []
    def __call__(self, s):
        for ln in s.split("\n"):
            ln = ln.strip()
            if ln: self.L.append(ln)
    def label(self, n): self.L.append(n + ":")
    def resolve_vm(self, start):
        q = []; out = []
        for ln in self.L[start:]:
            if ln.startswith("WAITVM"):
                tag = ln.split()[1]
                idx = max((i for i, t in enumerate(q) if t == tag), default=-1)
                if idx >= 0:
                    n = len(q) - idx - 1; q = q[idx+1:]
                    assert n <= 63, n
                    out.append(f"s_waitcnt vmcnt({n})")
                continue
            if ln.startswith(("buffer_", "global_")):
                tag = ln.split(";@")[1].strip() if ";@" in ln else None
                q.append(tag); ln = ln.split(";@")[0].strip()
                assert len(q) <= 63, "too many outstanding"
            out.append(ln)
        self.L[start:] = out
        return q
    def text(self): return "\n".join(("" if l.endswith(":") or l.startswith(".") or l.startswith(";") else "    ") + l for l in self.L) + "\n"

def resolve_lds(lines, q0):
    q = list(q0); out = []
    for ln in lines:
        if ln.startswith("WAITLDS"):
            tag = ln.split()[1]
            idx = max((i for i, t in enumerate(q) if t == tag), default=-1)
            if idx >= 0:
                n = min(len(q) - idx - 1, 15); q = q[len(q)-n:] if n else []
                out.append(f"s_waitcnt lgkmcnt({n})")
            continue
        if ln.startswith("ds_"):
            tag = ln.split(";@")[1].strip() if ";@" in ln else None
            q.append(tag); ln = ln.split(";@")[0].strip()
        if ln.startswith("s_waitcnt") and "lgkmcnt(0)" in ln: q = []
        out.append(ln)
    return out, q

def vr(b, n=1, k="v"):
    return f"{k}{b}" if n == 1 else f"{k}[{b}:{b+n-1}]"
def ar(b, n=1): return vr(b, n, "a")
def sr(b, n=1): return vr(b, n, "s")

class Weave:
    def __init__(self, mfmas):
        self.m = list(mfmas); n = len(self.m)
        self.pre = [[] for _ in range(n)]; self.post = [[] for _ in range(n)]
    def spread(self, instrs, g0, g1):
        n = len(instrs)
        for k, ins in enumerate(instrs):
            g = g0 + (k * (g1 - g0)) // n
            if isinstance(ins, (list, tuple)): self.post[g].extend(ins)
            else: self.post[g].append(ins)
    def lines(self):
        L = []
        for i, m in enumerate(self.m):
            L += self.pre[i]; L.append(m); L += self.post[i]
        return L
    def at(self, instrs, gaps):
        assert len(instrs) == len(gaps), (len(instrs), len(gaps))
        for ins, g in zip(instrs, gaps):
            if isinstance(ins, (list, tuple)): self.post[g].extend(ins)
            else: self.post[g].append(ins)
    def emit(self, A):
        for i, m in enumerate(self.m):
            for p in self.pre[i]: A(p)
            A(m)
            for p in self.post[i]: A(p)

_reg = re.compile(r"\b([vas])(\d+)\b|\b([vas])\[(\d+):(\d+)\]")
def regs_of(op):
    out = set()
    op = op.strip()
    if op in ("vcc",): return {("s", 106), ("s", 107)}
    if op == "exec": return {("s", 126), ("s", 127)}
    if op == "m0": return {("s", 124)}
    for m in _reg.finditer(op):
        if m.group(1): out.add((m.group(1), int(m.group(2))))
        else:
            for r in range(int(m.group(4)), int(m.group(5)) + 1): out.add((m.group(3), r))
    return out

TRANS = ("v_exp_f32", "v_log_f32", "v_rcp_f32", "v_rsq_f32", "v_sqrt_f32", "v_sin_f32", "v_cos_f32")
def parse(line):
    line = line.split(";")[0].strip()
    if not line or line.endswith(":") or line.startswith("."): return None
    parts = line.split(None, 1)
    opc = parts[0]
    rest = parts[1] if len(parts) > 1 else ""
    ops = [o.strip() for o in re.split(r",(?![^\[]*\])", rest)] if rest else []
    mods = ""
    if ops:
        lp = ops[-1].split(None, 1)
        if len(lp) > 1: ops[-1] = lp[0]; mods = lp[1]
    d = dict(opc=opc, ops=ops, mods=mods, w=set(), r=set(), kind="other", line=line)
    R = [regs_of(o) for o in ops]
    if opc.startswith("v_mfma"):
        d["kind"] = "mfma"; d["w"] = R[0]; d["ab"] = R[1] | R[2]; d["c"] = R[3]; d["r"] = R[1] | R[2] | R[3]
        d["passes"] = 8 if "32x32x16" in opc else 4
    elif opc.startswith("v_cmp"):
        d["kind"] = "valu"; d["w"] = R[0]; d["r"] = set().union(*R[1:])
    elif opc.startswith("v_readfirstlane") or opc.startswith("v_readlane"):
        d["kind"] = "valu"; d["w"] = R[0]; d["r"] = set().union(*R[1:]); d["rl"] = True
    elif opc.startswith("v_permlane"):
        d["kind"] = "valu"; d["w"] = R[0] | R[1]; d["r"] = R[0] | R[1]; d["perm"] = True
    elif opc.startswith("v_"):
        d["kind"] = "valu"; d["w"] = set(R[0]); d["r"] = set().union(*R[1:]) if len(R) > 1 else set()
        if opc.startswith(("v_fmac", "v_pk_fmac", "v_dot2c")): d["r"] |= R[0]
        if opc.startswith(("v_add_co", "v_sub_co", "v_addc_co")): d["w"] |= R[1]
        if opc.startswith("v_cndmask") and len(ops) == 3: d["r"] |= regs_of("vcc")
        if opc.replace("_e32", "").replace("_e64", "") in TRANS: d["trans"] = True
        if "dpp" in opc or "row_" in mods or "quad_perm" in mods: d["dpp"] = True
    elif opc.startswith("ds_read") or opc.startswith("ds_bpermute") or opc.startswith("ds_swizzle"):
        d["kind"] = "ds"; d["w"] = R[0]; d["r"] = set().union(*R[1:])
    elif opc.startswith("ds_write"):
        d["kind"] = "ds"; d["r"] = set().union(*R)
    elif opc.startswith(("buffer_load", "global_load")):
        d["kind"] = "vmem"
        if "lds" in mods.split() or "_lds_" in opc:
            d["r"] = set().union(*R) | regs_of("m0"); d["dma"] = True
        else:
            d["w"] = R[0]; d["r"] = set().union(*R[1:])
    elif opc.startswith(("buffer_store", "global_store", "buffer_atomic", "global_atomic")):
        d["kind"] = "vmem"; d["r"] = set().union(*R)
        if "x4" in opc or "x3" in opc: d["wide"] = R[0] if opc.startswith("buffer") else R[1]
    elif opc.startswith("s_"):
        d["kind"] = "salu"
        if opc.startswith(("s_cmp", "s_cbranch", "s_branch", "s_waitcnt", "s_barrier", "s_nop", "s_endpgm", "s_setprio", "s_sleep", "s_bitcmp")):
            d["r"] = set().union(*R) if R else set()
        else:
            d["w"] = set(R[0]) if R else set(); d["r"] = set().union(*R[1:]) if len(R) > 1 else set()
            if "saveexec" in opc: d["w"] |= regs_of("exec")
    return d

def check(lines, name=""):
    ins = []
    for ln in lines:
        p = parse(ln)
        if p: ins.append(p)
    errs = []
    for i, c in enumerate(ins):
        dist = 0
        for j in range(i - 1, max(-1, i - 24), -1):
            p = ins[j]
            need = 0; why = ""
            def req(n, w):
                nonlocal need, why
                if n > need: need, why = n, w
            if p["kind"] == "valu":
                wv = {r for r in p["w"] if r[0] in "va"}; wsg = {r for r in p["w"] if r[0] == "s"}
                if c["kind"] == "mfma" and wv & c["r"]: req(2, "valu->mfma")
                if p.get("trans") and c["kind"] == "valu" and not c.get("trans") and wv & c["r"]: req(1, "trans->valu")
                if p.get("trans") and c["kind"] in ("ds", "vmem") and wv & c["r"]: req(1, "trans->mem")
                if c.get("rl") and wv & c["r"]: req(1, "valu->readlane")
                if c.get("perm") and wv & c["r"]: req(2, "valu->permlane")
                if c.get("dpp") and wv & c["r"]: req(2, "valu->dpp")
                if c["kind"] == "valu" and wsg & c["r"]: req(4 if c.get("rl") else 2, "valu sgpr->valu")
                if c["kind"] == "vmem" and wsg & c["r"]: req(5, "valu sgpr->vmem")
            if p["kind"] == "mfma":
                P = p["passes"]
                big = {8: 12, 4: 8}[P]
                if c["kind"] == "mfma":
                    if p["w"] & c["ab"]: req(big, "mfma->mfma AB")
                    if p["w"] & c["c"] and not (p["w"] == c["c"] and c["passes"] == P): req({8: 10, 4: 6}[P], "mfma->mfma C overlap")
                    if p["w"] & c["w"] and not (p["w"] & c["c"]): req({8: 10, 4: 6}[P], "mfma->mfma WAW(conservative)")
                elif c["kind"] == "valu":
                    if p["w"] & (c["r"] | c["w"]): req(big, "mfma->valu")
                    if p["c"] & c["w"]: req({8: 7, 4: 3}[P], "mfma C WAR")
                elif c["kind"] in ("ds", "vmem"):
                    if p["w"] & (c["r"] | c["w"]): req(big, "mfma->mem")
            if p["kind"] == "salu" and ("s", 124) in p["w"] and c.get("dma"): req(1, "m0->dma")
            if p.get("wide") and c["kind"] == "valu" and p["wide"] & c["w"]: req(2, "wide store WAR")
            if p.get("wide") and c["kind"] in ("ds", "vmem", "mfma") and p["wide"] & c["w"]: req(1, "wide store WAR")
            if need > dist:
                errs.append(f"{name}: need {need} have {dist} [{why}]: '{p['line']}' -> '{c['line']}'")
            if p["opc"] == "s_nop": dist += int(p["ops"][0], 0) + 1
            else: dist += 1
            if dist > 20: break
    return errs
```

```python
from asmlib import *
from k1 import XN_OFF, KV_OFF, SLAB_OFF, WS_BYTES, srd, stamp, stamp_out, kd

def dpp_sum2(A, va, vb, sa, sb):
    for m in ("row_shr:1", "row_shr:2", "row_shr:4", "row_shr:8"):
        A(f"v_add_f32_dpp v{va}, v{va}, v{va} {m} row_mask:0xf bank_mask:0xf bound_ctrl:0")
        A(f"v_add_f32_dpp v{vb}, v{vb}, v{vb} {m} row_mask:0xf bank_mask:0xf bound_ctrl:0")
        A("s_nop 0")
    for m, rm in (("row_bcast:15", "0xa"), ("row_bcast:31", "0xc")):
        A(f"v_add_f32_dpp v{va}, v{va}, v{va} {m} row_mask:{rm} bank_mask:0xf")
        A(f"v_add_f32_dpp v{vb}, v{vb}, v{vb} {m} row_mask:{rm} bank_mask:0xf")
        A("s_nop 0")
    A(f"v_readlane_b32 s{sa}, v{va}, 63")
    A(f"v_readlane_b32 s{sb}, v{vb}, 63")
    A("s_nop 1")

def acc(t): return vr(32 + 16*t, 16) if t < 14 else ar(64 + 16*(t - 14), 16)

def gen_k1(name="kv_kernel", st_on=False, abl=""):
    A = Asm()
    A(f".p2align 8\n.type {name},@function")
    A.label(name)
    A("s_cmp_ge_u32 s2, 256")
    A(f"s_cbranch_scc1 L_{name}_end")
    stamp(A, 0, st_on)
    A("s_load_dwordx4 s[36:39], s[0:1], 0")
    A("s_load_dwordx4 s[40:43], s[0:1], 24")
    A("s_load_dwordx2 s[44:45], s[0:1], 104")
    A("v_and_b32 v1, 63, v0")
    A("v_lshrrev_b32 v26, 6, v0")
    A("s_and_b32 s46, s2, 7")
    A("v_readfirstlane_b32 s20, v26")
    A("s_lshr_b32 s47, s2, 3")
    A("s_and_b32 s24, s47, 7")
    A("s_lshr_b32 s47, s47, 3")
    A("s_lshr_b32 s25, s47, 1")
    A("s_and_b32 s47, s47, 1")
    A("s_lshl_b32 s23, s46, 1")
    A("s_add_u32 s23, s23, s47")
    A("s_lshr_b32 s21, s20, 1")
    A("s_and_b32 s22, s20, 1")
    A("s_lshl_b32 s30, s20, 13")
    A("s_add_u32 s30, s30, 65536")
    A("s_lshl_b32 s31, s20, 12")
    A("v_lshrrev_b32 v28, 5, v1")
    A("s_lshl_b32 s52, s20, 3")
    A("v_add_u32 v29, s52, v28")
    A("v_lshlrev_b32 v29, 13, v29")
    A("s_lshl_b32 s52, s23, 9")
    A("v_add_u32 v29, s52, v29")
    A("v_lshlrev_b32 v28, 2, v28")
    A("v_and_b32 v30, 31, v1")
    A("v_xor_b32 v28, v28, v30")
    A("v_xor_b32 v30, 8, v28")
    A("v_lshlrev_b32 v28, 4, v28")
    A("v_lshlrev_b32 v30, 4, v30")
    for c in range(4):
        k = 2*c*8192 - c*1024
        A(f"v_add_u32 v{10+c}, v29, v{28 if (c & 1) == 0 else 30}")
        if k: A(f"v_add_u32 v{10+c}, {k}, v{10+c}")
    A("s_lshl_b32 s52, s24, 8")
    A("s_lshl_b32 s53, s20, 6")
    A("s_add_u32 s52, s52, s53")
    A("v_lshrrev_b32 v28, 3, v1")
    A("v_add_u32 v28, s52, v28")
    A("v_lshlrev_b32 v28, 11, v28")
    A("v_lshrrev_b32 v29, 4, v1")
    A("v_and_b32 v30, 7, v1")
    A("v_xor_b32 v29, v29, v30")
    A("v_xor_b32 v30, 4, v29")
    A("v_lshlrev_b32 v29, 4, v29")
    A("v_lshlrev_b32 v30, 4, v30")
    for c in range(8):
        k = 8*c*2048 - (c & 3)*1024
        A(f"v_add_u32 v{2+c}, v28, v{29 + (c & 1)}")
        if k: A(f"v_add_u32 v{2+c}, {k}, v{2+c}")
    A("s_lshl_b32 s48, s2, 3")
    A("s_lshl_b32 s49, s20, 1")
    A("s_add_u32 s48, s48, s49")
    A("s_mul_i32 s49, s48, 896")
    A("v_lshlrev_b32 v27, 4, v1")
    for r in range(100, 108): A(f"v_mov_b32 v{r}, 0")
    A("s_mov_b32 s50, -1")
    A("s_mov_b32 s51, 0x00ffffff")
    A("s_mov_b32 s26, 0")
    A("s_mov_b32 s27, 0")
    A("s_waitcnt lgkmcnt(0)")
    srd(A, 4, 38, 2048*1024*2)
    A("s_cmp_eq_u32 s25, 0")
    A("s_cselect_b32 s40, s40, s42")
    A("s_cselect_b32 s41, s41, s43")
    srd(A, 8, 40, 1024*4096*2)
    srd(A, 12, 36, 2048*448*2)
    srd(A, 16, 44, WS_BYTES)
    A("s_mov_b64 exec, s[50:51]")
    A("buffer_load_dwordx4 v[100:103], v27, s[12:15], s49 offen")
    A("buffer_load_dwordx4 v[104:107], v27, s[12:15], s49 offen offset:896")
    A("s_mov_b64 exec, -1")
    def dmaW(m0):
        L = [[m0, "s_nop 0", "buffer_load_dwordx4 v10, s[8:11], s27 offen lds"]]
        for c in range(1, 4): L.append([f"buffer_load_dwordx4 v{10+c}, s[8:11], s27 offen offset:{c*1024} lds"])
        L[-1].append(f"s_add_u32 s27, s27, {32*8192}")
        return L
    def dmaA(m0, hi):
        L = []
        for c in range(4*hi, 4*hi + 4):
            g = []
            if c % 4 == 0: g += [m0, "s_nop 0"]
            g.append(f"buffer_load_dwordx4 v{2+c}, s[4:7], s26 offen offset:{(c & 3)*1024} lds")
            L.append(g)
        if hi: L[-1] += ["s_add_u32 s26, s26, 128", "s_cmp_ge_u32 s26, 2048", "s_cselect_b32 s26, s34, s26"]
        return L
    A("s_mov_b32 s34, 0x40000000")
    def flat(L):
        for g in L:
            for i in g: A(i)
    flat(dmaW("s_add_u32 m0, s31, 0")); flat(dmaA("s_add_u32 m0, s30, 0", 0)); flat(dmaA("s_add_u32 m0, s30, 4096", 1))
    flat(dmaW("s_add_u32 m0, s31, 16384")); flat(dmaA("s_add_u32 m0, s30, 32768", 0))
    flat(dmaW("s_add_u32 m0, s31, 32768")); flat(dmaA("s_add_u32 m0, s30, 32768+4096", 1)); flat(dmaW("s_add_u32 m0, s31, 49152"))
    A("v_and_b32 v28, 31, v1")
    A("s_lshl_b32 s52, s21, 7")
    A("v_add_u32 v28, s52, v28")
    A("v_lshlrev_b32 v28, 7, v28")
    A("v_add_u32 v28, 65536, v28")
    A("v_lshrrev_b32 v29, 1, v1")
    A("v_and_b32 v29, 7, v29")
    A("v_lshrrev_b32 v30, 5, v1")
    A("v_xor_b32 v29, v29, v30")
    for ks in range(4):
        A(f"v_xor_b32 v31, {2*ks}, v29")
        A(f"v_lshl_add_u32 v{18+ks}, v31, 4, v28")
    A("v_lshrrev_b32 v28, 2, v1")
    A("v_and_b32 v28, 3, v28")
    A("v_lshl_add_u32 v29, v30, 3, v28")
    A("v_lshlrev_b32 v29, 9, v29")
    A("v_lshrrev_b32 v31, 4, v1")
    A("v_and_b32 v31, 1, v31")
    A("v_lshl_add_u32 v29, v31, 5, v29")
    A("v_and_b32 v31, 3, v1")
    A("v_lshl_add_u32 v29, v31, 3, v29")
    A("s_lshl_b32 s52, s22, 8")
    A("v_add_u32 v29, s52, v29")
    for nb in range(4):
        A(f"v_xor_b32 v31, {nb}, v28")
        A(f"v_lshl_add_u32 v{22+nb}, v31, 6, v29")
    for r in list(range(32, 100)) + list(range(140, 256)): A(f"v_mov_b32 v{r}, 0")
    for r in range(64, 96): A(f"v_accvgpr_write_b32 a{r}, 0")
    A("s_waitcnt vmcnt(32)")
    X = (110, 120); SU = (130, 131); MU = (132, 133); VA = (134, 135); T = (136, 137)
    for row in range(2):
        for e in range(4):
            A(f"v_lshlrev_b32 v{X[row]+2*e}, 16, v{100+4*row+e}")
            A(f"v_and_b32 v{X[row]+2*e+1}, 0xffff0000, v{100+4*row+e}")
        A(f"v_add_f32 v{SU[row]}, v{X[row]}, v{X[row]+1}")
        for e in range(2, 8): A(f"v_add_f32 v{SU[row]}, v{SU[row]}, v{X[row]+e}")
    A("s_nop 1")
    dpp_sum2(A, SU[0], SU[1], 54, 55)
    for row in range(2):
        A(f"v_mov_b32 v{MU[row]}, s{54+row}")
        A(f"v_mul_f32 v{MU[row]}, 0x3b124925, v{MU[row]}")
        A(f"v_mov_b32 v{SU[row]}, 0")
    A("s_mov_b64 exec, s[50:51]")
    for e in range(8):
        for row in range(2):
            A(f"v_sub_f32 v{T[row]}, v{X[row]+e}, v{MU[row]}")
            A(f"v_fmac_f32 v{SU[row]}, v{T[row]}, v{T[row]}")
    A("s_mov_b64 exec, -1")
    A("s_nop 1")
    dpp_sum2(A, SU[0], SU[1], 54, 55)
    seq = [
        "v_mov_b32 v{VA}, s{S}", "v_mul_f32 v{VA}, 0x3b124925, v{VA}",
        "v_cvt_pk_bf16_f32 v{T}, v{MU}, v{VA}", "v_lshlrev_b32 v{MU}, 16, v{T}", "v_and_b32 v{VA}, 0xffff0000, v{T}",
        "v_add_f32 v{VA}, 0x3727c5ac, v{VA}", "v_cvt_pk_bf16_f32 v{T}, v{VA}, v{VA}", "v_lshlrev_b32 v{VA}, 16, v{T}",
        "v_sqrt_f32 v{VA}, v{VA}", "v_cvt_pk_bf16_f32 v{T}, v{VA}, v{VA}", "v_lshlrev_b32 v{VA}, 16, v{T}", "v_rcp_f32 v{VA}, v{VA}"]
    for s in seq:
        for row in range(2): A(s.format(VA=VA[row], MU=MU[row], T=T[row], S=54+row))
    for row in range(2):
        x = X[row]
        for e in range(8): A(f"v_sub_f32 v{x+e}, v{x+e}, v{MU[row]}")
        for e in range(4):
            A(f"v_cvt_pk_bf16_f32 v{T[row]}, v{x+2*e}, v{x+2*e+1}")
            A(f"v_lshlrev_b32 v{x+2*e}, 16, v{T[row]}")
            A(f"v_and_b32 v{x+2*e+1}, 0xffff0000, v{T[row]}")
        for e in range(8): A(f"v_mul_f32 v{x+e}, v{x+e}, v{VA[row]}")
        for e in range(4): A(f"v_cvt_pk_bf16_f32 v{100+4*row+e}, v{x+2*e}, v{x+2*e+1}")
    A("s_lshr_b32 s52, s48, 5")
    A("s_mul_i32 s52, s52, 28*1024")
    A("s_and_b32 s53, s48, 31")
    A("s_lshl_b32 s53, s53, 4")
    A("s_add_u32 s52, s52, s53")
    if XN_OFF: A(f"s_add_u32 s52, s52, {XN_OFF}")
    A("v_lshlrev_b32 v28, 9, v1")
    A("s_mov_b64 exec, s[50:51]")
    A("buffer_store_dwordx4 v[100:103], v28, s[16:19], s52 offen")
    A("buffer_store_dwordx4 v[104:107], v28, s[16:19], s52 offen offset:16")
    A("s_mov_b64 exec, -1")
    for r in range(108, 140): A(f"v_mov_b32 v{r}, 0")
    for r in range(100, 108): A(f"v_mov_b32 v{r}, 0")
    A("s_waitcnt vmcnt(22)")
    A("s_barrier")
    stamp(A, 1, st_on)
    if st_on: A("s_waitcnt lgkmcnt(0)")
    def reads(ks, fs):
        L = []
        base = 32*fs
        wo = (ks >> 1)*16384 + (ks & 1)*16*512
        for j in range(4):
            L.append(f"ds_read_b64_tr_b16 a[{base+16+4*j}:{base+16+4*j+1}], v{22+j} offset:{wo}")
            L.append(f"ds_read_b64_tr_b16 a[{base+16+4*j+2}:{base+16+4*j+3}], v{22+j} offset:{wo + 4*512}")
            L.append(f"ds_read_b128 a[{base+4*j}:{base+4*j+3}], v{18+ks} offset:{j*4096}")
        return L
    for i in reads(0, 0): A(i)
    A("s_mov_b32 s28, 0")
    A("s_mov_b32 s32, 0")
    A("s_add_u32 s36, s30, 65536")
    A("s_mov_b32 s33, 32768")
    A("s_cmp_eq_u32 s25, 0")
    A(f"s_cbranch_scc0 L_{name}_V")
    for isV in (0, 1):
        tag = "V" if isV else "K"
        if isV: A.label(f"L_{name}_V")
        A(".p2align 3")
        A.label(f"L_{name}_loop{tag}")
        for ks in range(4):
            fs = ks & 1
            base = 32*fs
            M = []
            for nb in range(4):
                for rb in range(4):
                    rbb = rb if nb % 2 == 0 else 3 - rb
                    t = nb*4 + rbb
                    c = ar(base + 4*rbb, 4); w = ar(base + 16 + 4*nb, 4)
                    a, b = (c, w) if isV else (w, c)
                    M.append(f"v_mfma_f32_32x32x16_bf16 {acc(t)}, {a}, {b}, {acc(t)}")
            W = Weave(M)
            G0, G1 = 3, 16
            if ks == 1:
                W.pre[0] += ["s_waitcnt vmcnt(20) lgkmcnt(0)", "s_barrier"]
                W.spread(reads(2, 0), 0, 6)
                W.spread(dmaW("s_mov_b32 m0, s31"), G0, G1)
                W.post[14].append("v_add_u32 v19, s33, v19")
            elif ks == 3:
                W.pre[0] += ["s_waitcnt vmcnt(16) lgkmcnt(0)", "s_barrier"]
                W.post[0] += [f"v_xor_b32 v{22+j}, 0x8000, v{22+j}" for j in range(4)]
                W.spread(reads(0, 0), 1, 7)
                W.spread(dmaW("s_add_u32 m0, s31, 16384"), G0, G1)
                W.post[14] += ["v_add_u32 v21, s33, v21", "s_add_u32 s36, s30, s32", "s_add_u32 s32, s32, s33",
                               "s_cmp_eq_u32 s32, 65536", "s_cselect_b32 s33, s35, s29"]
                W.post[15] += ["s_xor_b32 s31, s31, 0x8000", "s_add_u32 s28, s28, 1", "s_cmp_lt_u32 s28, 16"]
            else:
                W.pre[0].append("s_waitcnt lgkmcnt(0)")
                W.spread(reads(ks + 1, 1 - fs), 0, 6)
                W.post[8].append(f"v_add_u32 v{18+ks}, s33, v{18+ks}")
                W.spread(dmaA("s_mov_b32 m0, s36" if ks == 0 else "s_add_u32 m0, s36, 4096", ks // 2), G0, G1)
            def keep(i):
                if "d" in abl and i.startswith("buffer_load"): return False
                if "a" in abl and i.startswith("buffer_load") and "s[4:7]" in i: return False
                if "w" in abl and i.startswith("buffer_load") and "s[8:11]" in i: return False
                if "b" in abl and i.startswith("s_barrier"): return False
                if "t" in abl and i.startswith("ds_read_b64_tr"): return False
                if "r" in abl and i.startswith("ds_read_b128"): return False
                return True
            W.pre = [[i.replace("vmcnt(20) ", "").replace("vmcnt(16) ", "") if "n" in abl else i for i in g if keep(i)] for g in W.pre]
            W.post = [[i for i in g if keep(i)] for g in W.post]
            W.emit(A)
        A(f"s_cbranch_scc1 L_{name}_loop{tag}")
        stamp(A, 2, st_on)
        A("s_lshl_b32 s52, s23, 6")
        A("s_lshl_b32 s53, s24, 3")
        A("s_add_u32 s52, s52, s53")
        A("s_lshl_b32 s53, s21, 2")
        A("s_add_u32 s52, s52, s53")
        A("s_lshl_b32 s52, s52, 15")
        A(f"s_add_u32 s52, s52, {KV_OFF + (16384 if isV else 0)}")
        A(f"s_lshl_b32 s53, s22, {12 if isV else 13}")
        A("s_add_u32 s52, s52, s53")
        A("s_nop 3")
        for t in range(16):
            nb, rb = t // 4, t % 4
            if t < 14: T = 32 + 16*t
            else:
                T = 32 + 16*(t - 14)
                for e in range(16): A(f"v_accvgpr_read_b32 v{T+e}, a{64+16*(t-14)+e}")
            for e in range(8): A(f"v_cvt_pk_bf16_f32 v{T+e}, v{T+2*e}, v{T+2*e+1}")
            for tt in range(2):
                off = rb*32768 + ((tt*8 + nb)*1024 if isV else (2*nb + tt)*1024)
                A(f"s_add_u32 s53, s52, {off}")
                A(f"buffer_store_dwordx4 v[{T+4*tt}:{T+4*tt+3}], v27, s[16:19], s53 offen")
        stamp(A, 3, st_on)
        stamp_out(A, 5, st_on, 16)
        A("s_endpgm")
    A.label(f"L_{name}_end")
    A("s_endpgm")
    idx = A.L.index("s_mov_b32 s34, 0x40000000")
    A.L[idx:idx] = ["s_mov_b32 s35, 0xffff0000", "s_mov_b32 s29, 32768"]
    return A

if __name__ == "__main__":
    import sys
    A = gen_k1(st_on=len(sys.argv) > 1, abl=sys.argv[2] if len(sys.argv) > 2 else "")
    errs = check(A.L, "k1")
    print("\n".join(errs[:40]), len(errs))
    s = "; @launch kernel=kv_kernel grid=(256,1,1) block=(256,1,1) lds=163840\n" + '.amdgcn_target "amdgcn-amd-amdhsa--gfx950"\n.text\n' + A.text() + kd("kv_kernel", 512, 256)
    open("k1_only.s" if len(sys.argv) < 3 else f"k1_abl_{sys.argv[2]}.s", "w").write(s)
```

```python
from asmlib import *
from k1 import XN_OFF, KV_OFF, SLAB_OFF, WS_BYTES, srd, stamp, stamp_out, kd
import struct
def f32(x): return hex(struct.unpack("<I", struct.pack("<f", x))[0])
import math

V_LANE=1; V_L16=2; V_L16B=3; V_RD=4; V_LS=5; V_LL=6; V_MX=7; V_T0=8; V_T1=9; V_THR=10; V_T2=11
V_DO=12
V_RB=20
V_RC=24
F=32
S=64; E=80; NM=96; P=112
QS=128; QL=192
OS=0; OL=128
S_WS=4; S_W=8; S_B=12
S_WAVE=20; S_RR=21; S_ROLE=22; S_H=23; S_I=24; S_QB=25
S_PA=26; S_PB=27; S_RBEG=28; S_REND=29; S_KP=30; S_VP=31; S_JK=32; S_JV=33; S_JTK=34; S_JTV=35
S_D=36; S_CNT=37; S_RR8=38; S_W4=39; S_T0=40; S_T1=41; S_T2=42; S_SO=43; S_QBL=44; S_W7=45
NEG = f32(-1e30)
THR = f32(8.0)
D = 5

class VM:
    def __init__(self): self.q = []
    def issue(self, tag): self.q.append(tag)
    def wait(self, tag):
        idx = max((i for i, t in enumerate(self.q) if t == tag), default=-1)
        if idx < 0: return None
        n = len(self.q) - idx - 1
        self.q = self.q[idx+1:]
        assert n <= 63
        return f"s_waitcnt vmcnt({n})"

def halfsum(A, v, t, op="v_add_f32"):
    A(f"v_mov_b32 v{t}, v{v}")
    A("s_nop 1")
    A(f"v_permlane32_swap_b32 v{v}, v{t}")
    A("s_nop 1")
    A(f"{op} v{v}, v{v}, v{t}")

def max_tree(dst, t):
    L = [f"v_max3_f32 v{dst}, v{S}, v{S+1}, v{S+2}", f"v_max3_f32 v{t}, v{S+3}, v{S+4}, v{S+5}"]
    for k in range(6, 14, 4):
        L.append(f"v_max3_f32 v{dst}, v{dst}, v{S+k}, v{S+k+1}")
        L.append(f"v_max3_f32 v{t}, v{t}, v{S+k+2}, v{S+k+3}")
    L.append(f"v_max3_f32 v{dst}, v{dst}, v{S+14}, v{S+15}")
    L.append(f"v_max_f32 v{dst}, v{dst}, v{t}")
    return L

def gen_k2(name="attn_kernel", st_on=False, abl=""):
    global D
    if "7" in abl: D = 7
    if "3" in abl: D = 3
    A = Asm()
    N = name
    A(f".p2align 8\n.type {name},@function")
    A.label(name)
    A("s_cmp_ge_u32 s2, 256")
    A(f"s_cbranch_scc1 L_{N}_end")
    stamp(A, 0, st_on)
    A("s_load_dwordx2 s[48:49], s[0:1], 16")
    A("s_load_dwordx2 s[50:51], s[0:1], 40")
    A("s_load_dwordx4 s[52:55], s[0:1], 56")
    A("s_load_dwordx2 s[56:57], s[0:1], 72")
    A("s_load_dwordx2 s[58:59], s[0:1], 104")
    A(f"v_and_b32 v{V_LANE}, 63, v0")
    A(f"v_lshrrev_b32 v{V_T0}, 6, v0")
    A(f"s_and_b32 s{S_T0}, s2, 7")
    A(f"v_readfirstlane_b32 s{S_WAVE}, v{V_T0}")
    A(f"s_lshr_b32 s{S_T1}, s2, 3")
    A(f"s_lshr_b32 s{S_I}, s{S_T1}, 1")
    A(f"s_and_b32 s{S_T1}, s{S_T1}, 1")
    A(f"s_lshl_b32 s{S_H}, s{S_T0}, 1")
    A(f"s_add_u32 s{S_H}, s{S_H}, s{S_T1}")
    A(f"s_and_b32 s{S_RR}, s{S_WAVE}, 1")
    A(f"s_lshr_b32 s{S_ROLE}, s{S_WAVE}, 1")
    A(f"s_lshl_b32 s{S_T0}, s{S_I}, 1")
    A(f"s_sub_u32 s{S_QBL}, 62, s{S_T0}")
    A(f"s_add_u32 s{S_QBL}, s{S_QBL}, s{S_RR}")
    A(f"s_add_u32 s{S_T1}, s{S_T0}, s{S_RR}")
    A(f"s_cmp_eq_u32 s{S_ROLE}, 0")
    A(f"s_cselect_b32 s{S_QB}, s{S_QBL}, s{S_T1}")
    A(f"s_lshl_b32 s{S_RR8}, s{S_RR}, 13")
    A(f"s_lshl_b32 s{S_W4}, s{S_WAVE}, 12")
    A(f"s_mul_i32 s{S_W7}, s{S_WAVE}, 7168")
    A(f"v_lshlrev_b32 v{V_L16}, 4, v{V_LANE}")
    A(f"v_add_u32 v{V_L16B}, 4096, v{V_L16}")
    A("s_waitcnt lgkmcnt(0)")
    srd(A, S_WS, 58, WS_BYTES)
    srd(A, S_W, 48, 448*4096*2)
    srd(A, S_B, 54, 1792*2)
    vm0 = len(A.L)
    A(f"v_lshrrev_b32 v{V_T0}, 5, v{V_LANE}")
    A(f"s_lshl_b32 s{S_T0}, s{S_WAVE}, 3")
    A(f"v_add_u32 v{V_T1}, s{S_T0}, v{V_T0}")
    A(f"v_lshlrev_b32 v{V_T1}, 13, v{V_T1}")
    A(f"s_lshl_b32 s{S_T0}, s{S_H}, 9")
    A(f"v_add_u32 v{V_T1}, s{S_T0}, v{V_T1}")
    A(f"v_lshlrev_b32 v{V_T0}, 2, v{V_T0}")
    A(f"v_and_b32 v{V_T2}, 31, v{V_LANE}")
    A(f"v_xor_b32 v{V_T0}, v{V_T0}, v{V_T2}")
    A(f"v_xor_b32 v{V_T2}, 8, v{V_T0}")
    A(f"v_lshlrev_b32 v{V_T0}, 4, v{V_T0}")
    A(f"v_lshlrev_b32 v{V_T2}, 4, v{V_T2}")
    for c in range(4):
        k = 2*c*8192 - c*1024
        A(f"v_add_u32 v{V_DO+c}, v{V_T1}, v{V_T0 if c % 2 == 0 else V_T2}")
        if k: A(f"v_add_u32 v{V_DO+c}, {k}, v{V_DO+c}")
    WQ_SLOT = [3, 4, 8, 9, 0, 5, 1, 6, 2, 7, 3, 4, 8, 9]
    def wq_dma(c):
        L = [f"s_add_u32 m0, s{S_W4}, {WQ_SLOT[c]*16384}", f"s_mov_b32 s{S_SO}, {c*32*8192}"]
        for j in range(4):
            L.append(f"buffer_load_dwordx4 v{V_DO+j}, s[{S_W}:{S_W+3}], s{S_SO} offen offset:{j*1024} lds ;@W{c}")
        return L
    def xn_loads(k0, k1, sbase, tag="xn"):
        L = []
        for kk in range(k0, k1):
            if kk % 4 == 0 or kk == k0: L.append(f"s_add_u32 s{S_T2}, s{sbase}, {(kk//4)*4096}")
            L.append(f"buffer_load_dwordx4 a[{4*kk}:{4*kk+3}], v{V_L16}, s[{S_WS}:{S_WS+3}], s{S_T2} offen offset:{(kk % 4)*1024} ;@{tag}{kk}")
        return L
    A(f"s_mul_i32 s{S_T1}, s{S_QB}, {28*1024}")
    if XN_OFF: A(f"s_add_u32 s{S_T1}, s{S_T1}, {XN_OFF}")
    for i in wq_dma(0): A(i)
    for i in xn_loads(0, 4, S_T1): A(i)
    for i in wq_dma(1): A(i)
    for i in xn_loads(4, 28, S_T1): A(i)
    for c in range(2, 8):
        for i in wq_dma(c): A(i)
    def read_bases(rowstride, hmul, nsets, xshift):
        A(f"v_lshrrev_b32 v{V_T0}, 2, v{V_LANE}")
        A(f"v_and_b32 v{V_T0}, 3, v{V_T0}")
        A(f"v_lshrrev_b32 v{V_T1}, 5, v{V_LANE}")
        A(f"v_mad_u32_u24 v{V_T1}, v{V_T1}, {hmul}, v{V_T0}")
        A(f"v_mul_u32_u24 v{V_T1}, {rowstride}, v{V_T1}")
        A(f"v_lshrrev_b32 v{V_T2}, 4, v{V_LANE}")
        A(f"v_and_b32 v{V_T2}, 1, v{V_T2}")
        A(f"v_lshl_add_u32 v{V_T1}, v{V_T2}, 5, v{V_T1}")
        A(f"v_and_b32 v{V_T2}, 3, v{V_LANE}")
        A(f"v_lshl_add_u32 v{V_T1}, v{V_T2}, 3, v{V_T1}")
        if xshift: A(f"v_lshrrev_b32 v{V_T0}, {xshift}, v{V_T0}")
        for p in range(nsets):
            A(f"v_xor_b32 v{V_T2}, {p}, v{V_T0}")
            A(f"v_lshl_add_u32 v{V_RB+p}, v{V_T2}, 6, v{V_T1}")
    read_bases(512, 8, 4, 0)
    A(f"v_lshrrev_b32 v{V_T0}, 5, v{V_LANE}")
    A(f"v_lshlrev_b32 v{V_T0}, 2, v{V_T0}")
    A(f"v_and_b32 v{V_THR}, 31, v{V_LANE}")
    A(f"v_sub_u32 v{V_THR}, v{V_THR}, v{V_T0}")
    A(f"v_mov_b32 v{V_LS}, 0")
    A(f"v_mov_b32 v{V_LL}, 0")
    for r in range(16): A(f"v_mov_b32 v{NM+r}, 0")
    for r in range(112, 256): A(f"v_accvgpr_write_b32 a{r}, 0")
    A(f"s_lshl_b32 s{S_T0}, s{S_H}, 21")
    A(f"s_add_u32 s{S_T0}, s{S_T0}, {KV_OFF}")
    A(f"s_add_u32 s{S_T0}, s{S_T0}, s{S_RR8}")
    A(f"s_mov_b32 s{S_KP}, s{S_T0}")
    A(f"s_add_u32 s{S_VP}, s{S_T0}, 16384")
    A(f"s_lshl_b32 s{S_T1}, s{S_I}, 16")
    A(f"s_add_u32 s{S_T1}, s{S_T1}, 65536")
    A(f"s_cmp_eq_u32 s{S_ROLE}, 0")
    A(f"s_cselect_b32 s{S_T1}, 1, s{S_T1}")
    A(f"s_add_u32 s{S_JK}, s{S_KP}, s{S_T1}")
    A(f"s_add_u32 s{S_JV}, s{S_VP}, s{S_T1}")
    A(f"s_add_u32 s{S_JTK}, s{S_KP}, {33*32768}")
    A(f"s_add_u32 s{S_JTV}, s{S_VP}, {33*32768}")
    A(f"s_mul_i32 s{S_RBEG}, s{S_ROLE}, {5*16384}")
    A(f"s_add_u32 s{S_REND}, s{S_RBEG}, {5*16384}")
    def kv_dma(isV, m0expr):
        p, j, jt = (S_VP, S_JV, S_JTV) if isV else (S_KP, S_JK, S_JTK)
        L = [[m0expr, "s_nop 0", f"buffer_load_dwordx4 v{V_L16}, s[{S_WS}:{S_WS+3}], s{p} offen lds"]]
        for k in range(1, 4): L.append(f"buffer_load_dwordx4 v{V_L16}, s[{S_WS}:{S_WS+3}], s{p} offen offset:{k*1024} lds")
        L.append(["s_add_u32 m0, m0, 4096", "s_nop 0", f"buffer_load_dwordx4 v{V_L16B}, s[{S_WS}:{S_WS+3}], s{p} offen lds"])
        for k in range(1, 4): L.append(f"buffer_load_dwordx4 v{V_L16B}, s[{S_WS}:{S_WS+3}], s{p} offen offset:{k*1024} lds")
        L.append([f"s_add_u32 s{p}, s{p}, 32768", f"s_cmp_eq_u32 s{p}, s{j}", f"s_cselect_b32 s{p}, s{jt}, s{p}"])
        return L
    A(f"s_add_u32 s{S_T1}, s{S_RBEG}, s{S_RR8}")
    def kv_item_static(n):
        isV = (n == 2)
        L = kv_dma(isV, f"s_add_u32 m0, s{S_T1}, {n*16384}")
        return L

    def stream_gemm(nchunks, per, frag_reads, mfma, slot_of, slot_bytes, nbase, at_barrier, wait_tag, pre_mfma=None, extra=None):
        n = nchunks*per
        M = [mfma(m // per, m % per, vr(F + 4*(m % 8), 4)) for m in range(n)]
        W = Weave(M)
        def chunk_open(c):
            L = []
            L.append("WAITVM " + wait_tag(c))
            L.append("s_barrier")
            rc = V_RC + 4*(c % 2)
            for p in range(nbase): L.append(f"v_add_u32 v{rc+p}, {slot_of(c)*slot_bytes}, v{V_RB+p}")
            return L
        def rd(m):
            c, j = m // per, m % per
            f = F + 4*(m % 8)
            r0, r1 = frag_reads(c, j, V_RC + 4*(c % 2))
            return [r0.format(vr(f, 2)), r1.format(vr(f+2, 2))]
        for i in chunk_open(0): A(i)
        for i in at_barrier(0):
            for ii in (i if isinstance(i, list) else [i]): A(ii)
        for m in range(D):
            for i in rd(m): A(i)
        for m in range(n):
            left = min(D - 1, n - 1 - m)
            W.pre[m].append(f"s_waitcnt lgkmcnt({2*left})")
            if pre_mfma:
                W.pre[m].extend(pre_mfma(m // per, m % per))
            m2 = m + D
            if m2 < n:
                if m2 % per == 0:
                    c = m2 // per
                    W.post[m].extend(chunk_open(c))
                    ab = at_barrier(c)
                    if ab: W.spread(ab, m + 1, min(m + 1 + max(len(ab), 1), n))
                W.post[m].extend(rd(m2))
        if extra: extra(W)
        W.emit(A)

    stamp(A, 1, st_on)
    if st_on: A("s_waitcnt lgkmcnt(0)")
    def q_reads(c, j, rc):
        ks, nb = j // 8, j % 8
        o = (nb >> 2)*256 + 16*ks*512
        return (f"ds_read_b64_tr_b16 {{0}}, v{rc + (nb & 3)} offset:{o}", f"ds_read_b64_tr_b16 {{0}}, v{rc + (nb & 3)} offset:{o + 4*512}")
    def q_mfma(c, j, fr):
        ks, nb = j // 8, j % 8
        kk = 2*c + ks
        acc = vr(QS + 16*nb, 16)
        return f"v_mfma_f32_32x32x16_bf16 {acc}, {fr}, {ar(4*kk, 4)}, {'0' if kk == 0 else acc}"
    def q_bar(c):
        L = []
        if c in (0, 1): L += [[x] for x in wq_dma(8 + c)]
        if 2 <= c <= 5: L += [[x] for x in wq_dma(8 + c)]
        if c in (7, 9, 11): L += kv_item_static((c - 7)//2)
        return L
    def q_pre(c, j):
        if j % 8 == 0:
            return [f"WAITVM xn{2*c + j//8}"]
        return []
    def q_extra(W):
        for kk in range(26):
            for e in range(4): W.post[(kk + 2)*8 + 2*e].append(f"v_accvgpr_write_b32 a{4*kk+e}, 0")
    stream_gemm(14, 16, q_reads, q_mfma, lambda c: WQ_SLOT[c], 16384, 4, q_bar, lambda c: f"W{c}", q_pre, q_extra)
    left = A.resolve_vm(vm0); assert len(left) <= 24, left
    for r in range(104, 112): A(f"v_accvgpr_write_b32 a{r}, 0")
    A("s_barrier")
    A(f"s_mov_b32 s{S_T0}, {f32(math.log2(math.e)/16.0)}")
    A("s_nop 3")
    A(f"s_cmp_eq_u32 s{S_ROLE}, 0")
    A(f"s_cbranch_scc0 L_{N}_qY")
    for p in range(63, -1, -1):
        A(f"v_mul_f32 v{QS+2*p}, s{S_T0}, v{QS+2*p}")
        A(f"v_mul_f32 v{QS+2*p+1}, s{S_T0}, v{QS+2*p+1}")
        A(f"v_cvt_pk_bf16_f32 v{QL+p}, v{QS+2*p}, v{QS+2*p+1}")
    A(f"s_mul_i32 s{S_T2}, s{S_RR}, {5*16384}")
    A(f"s_add_u32 s{S_T2}, s{S_T2}, {4*16384}")
    A(f"v_add_u32 v{V_RD}, s{S_T2}, v{V_L16}")
    for k in range(16): A(f"ds_write_b128 v{V_RD}, {vr(QL+4*k, 4)} offset:{k*1024}")
    A("s_waitcnt lgkmcnt(0)")
    A("s_barrier")
    A(f"s_mov_b32 s{S_D}, s{S_QBL}")
    A(f"s_branch L_{N}_qjoin")
    A.label(f"L_{N}_qY")
    for p in range(64):
        A(f"v_mul_f32 v{QS+2*p}, s{S_T0}, v{QS+2*p}")
        A(f"v_mul_f32 v{QS+2*p+1}, s{S_T0}, v{QS+2*p+1}")
        A(f"v_cvt_pk_bf16_f32 v{QS+p}, v{QS+2*p}, v{QS+2*p+1}")
    A(f"s_mul_i32 s{S_T2}, s{S_RR}, {5*16384}")
    A(f"s_add_u32 s{S_T2}, s{S_T2}, {4*16384}")
    A(f"v_add_u32 v{V_RD}, s{S_T2}, v{V_L16}")
    A("s_barrier")
    for k in range(16): A(f"ds_read_b128 {vr(QL+4*k, 4)}, v{V_RD} offset:{k*1024}")
    A("s_waitcnt lgkmcnt(0)")
    A(f"s_mov_b32 s{S_D}, s{S_QB}")
    A.label(f"L_{N}_qjoin")
    stamp(A, 2, st_on)
    if st_on: A("s_waitcnt lgkmcnt(0)")

    def nxt(d, s):
        return [f"s_add_u32 s{d}, s{s}, 16384", f"s_cmp_eq_u32 s{d}, s{S_REND}", f"s_cselect_b32 s{d}, s{S_RBEG}, s{d}"]
    def bar_open(a, b, isV_load):
        imm = ["s_waitcnt vmcnt(16)", "s_nop 0" if "b" in abl else "s_barrier", f"s_add_u32 s{S_T2}, s{a}, s{S_RR8}"] + nxt(a, b) + [f"v_add_u32 v{V_RD}, s{a}, v{V_L16}"]
        return imm, kv_dma(isV_load, f"s_mov_b32 m0, s{S_T2}")
    def frd(m16):
        return f"ds_read_b128 {vr(F + 4*(m16 % 8), 4)}, v{V_RD} offset:{m16*1024}"
    def half(M, a, b, isV_load, fill, nxt_reads=True):
        W = Weave(M)
        for m in range(16):
            left = D - 1 if nxt_reads else min(D - 1, 15 - m)
            if "w" not in abl and "r" not in abl: W.pre[m].append(f"s_waitcnt lgkmcnt({left})")
            m2 = m + D
            if m2 == 16 and nxt_reads:
                imm, dma = bar_open(a, b, isV_load)
                W.post[m].extend(imm)
            if (m2 < 16 or nxt_reads) and "r" not in abl:
                W.post[m].append(frd(m2 % 16))
        fill(W)
        return W
    def qk(q):
        if "q" in abl:
            return [f"v_mfma_f32_32x32x16_bf16 {vr(S if m%2 else E,16)}, {vr(F+4*(m%8),4)}, {vr(q+4*m,4)}, {vr(S if m%2 else E,16)}" for m in range(16)]
        return [f"v_mfma_f32_32x32x16_bf16 {vr(S,16)}, {vr(F+4*(m%8),4)}, {vr(q+4*m,4)}, {vr(NM,16) if m == 0 else vr(S,16)}" for m in range(16)]
    def pv(o):
        return [f"v_mfma_f32_32x32x16_bf16 {ar(o+16*(m%8),16)}, {vr(F+4*(m%8),4)}, {vr(P+4*(m//8),4)}, {ar(o+16*(m%8),16)}" for m in range(16)]
    def sumcvt(l):
        L = []
        for k in range(8):
            L.append(f"v_add_f32 v{l}, v{l}, v{E+2*k}")
            L.append(f"v_cvt_pk_bf16_f32 v{P+k}, v{E+2*k}, v{E+2*k+1}")
            L.append(f"v_add_f32 v{l}, v{l}, v{E+2*k+1}")
        return L
    def expmax():
        L = []
        mt = max_tree(V_MX, V_T0)
        for k in range(8):
            L.append(f"v_exp_f32 v{E+2*k}, v{S+2*k}")
            L.append(mt[k])
            L.append(f"v_exp_f32 v{E+2*k+1}, v{S+2*k+1}")
        return L
    dmaK = kv_dma(False, f"s_mov_b32 m0, s{S_T2}")
    dmaV = kv_dma(True, f"s_mov_b32 m0, s{S_T2}")
    A(f"s_add_u32 s{S_PA}, s{S_RBEG}, {3*16384}")
    A(f"s_add_u32 s{S_PB}, s{S_RBEG}, {4*16384}")
    imm, dma = bar_open(S_PA, S_PB, False)
    for i in imm: A(i)
    for m in range(D): A(frd(m))
    def body(q, o, l, slow, ret, resetnm=False):
        def f1(W):
            if "d" not in abl: W.spread(dmaV, 0, 9)
            if "v" not in abl: W.spread(sumcvt(l), 0, 14)
        if resetnm:
            for r in range(16): A(f"v_mov_b32 v{NM+r}, 0")
            A(f"s_sub_u32 s{S_D}, s{S_QBL}, 32")
        half(qk(q), S_PA, S_PB, False, f1).emit(A)
        def f2(W):
            if "d" not in abl: W.spread(dmaK, 0, 9)
            if "v" not in abl: W.spread(expmax(), 2, 15)
            W.post[1].append(f"s_sub_i32 s{S_D}, s{S_D}, 1")
        half(pv(o), S_PB, S_PA, True, f2).emit(A)
        if slow is not None:
            A(f"v_cmp_lt_f32 vcc, {THR}, v{V_MX}")
            A(f"s_cmp_le_i32 s{S_D}, 0")
            A(f"s_cbranch_scc1 {slow}")
            if not abl: A(f"s_cbranch_vccnz {slow}")
            A.label(ret)
    def slowpath(lab, ret, o, l, first):
        A.label(lab)
        A(f"s_cmp_le_i32 s{S_D}, 0")
        A(f"s_cbranch_scc0 {lab}_nomask")
        A(f"s_lshl_b32 s{S_T0}, s{S_D}, 5")
        A(f"v_add_u32 v{V_T1}, s{S_T0}, v{V_THR}")
        A(f"v_mov_b32 v{V_T2}, {NEG}")
        for r in range(16):
            A(f"v_cmp_gt_i32 vcc, {8*(r//4) + (r % 4)}, v{V_T1}")
            A("s_nop 1")
            A(f"v_cndmask_b32 v{S+r}, v{S+r}, v{V_T2}, vcc")
        A.label(f"{lab}_nomask")
        for i in max_tree(V_MX, V_T0): A(i)
        halfsum(A, V_MX, V_T0, "v_max_f32")
        if not first:
            A(f"v_cmp_lt_f32 vcc, {THR}, v{V_MX}")
            A(f"s_cbranch_vccz {lab}_exp")
            A(f"v_max_f32 v{V_MX}, 0, v{V_MX}")
            A(f"v_exp_f32 v{V_T1}, -v{V_MX}")
            A("s_nop 0")
            A(f"v_mul_f32 v{l}, v{l}, v{V_T1}")
            for r in range(0, 128, 4):
                for e in range(4): A(f"v_accvgpr_read_b32 v{E+e}, a{o+r+e}")
                for e in range(4): A(f"v_mul_f32 v{E+e}, v{E+e}, v{V_T1}")
                for e in range(4): A(f"v_accvgpr_write_b32 a{o+r+e}, v{E+e}")
        for r in range(16): A(f"v_sub_f32 v{S+r}, v{S+r}, v{V_MX}")
        for r in range(16): A(f"v_sub_f32 v{NM+r}, v{NM+r}, v{V_MX}")
        if not first: A.label(f"{lab}_exp")
        for r in range(16): A(f"v_exp_f32 v{E+r}, v{S+r}")
        A("s_nop 1")
        A(f"s_branch {ret}")
    A(f"s_cmp_eq_u32 s{S_ROLE}, 0")
    A(f"s_cbranch_scc0 L_{N}_Ystart")
    half(qk(QL), S_PB, S_PA, True, lambda W: W.spread(dmaK, 0, 9)).emit(A)
    A(f"s_mov_b32 s{S_CNT}, 32")
    A("s_nop 7\ns_nop 3")
    A(f"s_branch L_{N}_spF_B")
    A.label(f"L_{N}_Ystart")
    half(qk(QS), S_PB, S_PA, True, lambda W: W.spread(dmaK, 0, 9)).emit(A)
    A(f"s_lshl_b32 s{S_CNT}, s{S_I}, 1")
    A(f"s_add_u32 s{S_CNT}, s{S_CNT}, 1")
    A("s_nop 7\ns_nop 3")
    A(f"s_branch L_{N}_spF_A")
    A.label(f"L_{N}_loopA")
    body(QS, OS, V_LS, f"L_{N}_spA", f"L_{N}_retA")
    A(f"s_sub_u32 s{S_CNT}, s{S_CNT}, 1")
    A(f"s_cmp_lg_u32 s{S_CNT}, 0")
    A(f"s_cbranch_scc1 L_{N}_loopA")
    body(QL, OS, V_LS, None, None, resetnm=True)
    A(f"s_lshl_b32 s{S_T0}, s{S_I}, 1")
    A(f"s_sub_u32 s{S_CNT}, 30, s{S_T0}")
    A(f"s_branch L_{N}_spF_B")
    A.label(f"L_{N}_loopB")
    body(QL, OL, V_LL, f"L_{N}_spB", f"L_{N}_retB")
    A(f"s_sub_u32 s{S_CNT}, s{S_CNT}, 1")
    A.label(f"L_{N}_loopB_entry")
    A(f"s_cmp_lg_u32 s{S_CNT}, 0")
    A(f"s_cbranch_scc1 L_{N}_loopB")
    for i in sumcvt(V_LL): A(i)
    A("s_waitcnt vmcnt(0) lgkmcnt(0)")
    A("s_barrier")
    for i in nxt(S_PA, S_PB): A(i)
    A(f"v_add_u32 v{V_RD}, s{S_PA}, v{V_L16}")
    for m in range(D): A(frd(m))
    half(pv(OL), None, None, None, lambda W: None, nxt_reads=False).emit(A)
    A(f"s_branch L_{N}_combine")
    slowpath(f"L_{N}_spA", f"L_{N}_retA", OS, V_LS, False)
    slowpath(f"L_{N}_spB", f"L_{N}_retB", OL, V_LL, False)
    slowpath(f"L_{N}_spF_A", f"L_{N}_loopA", OS, V_LS, True)
    slowpath(f"L_{N}_spF_B", f"L_{N}_loopB_entry", OL, V_LL, True)

    A.label(f"L_{N}_combine")
    stamp(A, 3, st_on)
    A("s_waitcnt lgkmcnt(0)")
    A("s_barrier")
    halfsum(A, V_LL, V_T0)
    halfsum(A, V_LS, V_T0)
    A(f"s_lshl_b32 s{S_T0}, s{S_RR}, 15")
    A(f"v_add_u32 v{V_RD}, s{S_T0}, v{V_L16}")
    A(f"s_lshl_b32 s{S_T0}, s{S_RR}, 9")
    A(f"s_add_u32 s{S_T0}, s{S_T0}, 65536")
    A(f"v_lshlrev_b32 v{V_T2}, 3, v{V_LANE}")
    A(f"v_add_u32 v{V_T2}, s{S_T0}, v{V_T2}")
    A(f"s_cmp_eq_u32 s{S_ROLE}, 0")
    A(f"s_cbranch_scc1 L_{N}_cX")
    A(f"v_mov_b32 v{V_T0}, v{NM}")
    A(f"v_mov_b32 v{V_T1}, v{V_LL}")
    A(f"ds_write_b64 v{V_T2}, v[{V_T0}:{V_T1}]")
    for k in range(32): A(f"ds_write_b128 v{V_RD}, {ar(OL+4*k, 4)} offset:{k*1024}")
    A("s_waitcnt lgkmcnt(0)")
    A("s_barrier")
    A(f"v_rcp_f32 v{V_T0}, v{V_LS}")
    for k in range(32):
        T = F + 4*(k % 4)
        for e in range(4): A(f"v_accvgpr_read_b32 v{T+e}, a{OS+4*k+e}")
        for e in range(4): A(f"v_mul_f32 v{T+e}, v{T+e}, v{V_T0}")
        A(f"v_cvt_pk_bf16_f32 v{QL+2*k}, v{T}, v{T+1}")
        A(f"v_cvt_pk_bf16_f32 v{QL+2*k+1}, v{T+2}, v{T+3}")
    A(f"s_branch L_{N}_cjoin")
    A.label(f"L_{N}_cX")
    A("s_barrier")
    A(f"ds_read_b64 v[{V_T0}:{V_T1}], v{V_T2}")
    for k in range(8): A(f"ds_read_b128 {vr(QS+4*k, 4)}, v{V_RD} offset:{k*1024}")
    A("s_waitcnt lgkmcnt(8)")
    A(f"v_min_f32 v{V_MX}, v{NM}, v{V_T0}")
    A(f"v_sub_f32 v{V_T2}, v{V_MX}, v{NM}")
    A(f"v_sub_f32 v{V_T0}, v{V_MX}, v{V_T0}")
    A(f"v_exp_f32 v{V_T2}, v{V_T2}")
    A(f"v_exp_f32 v{V_T0}, v{V_T0}")
    A("s_nop 0")
    A(f"v_mul_f32 v{V_MX}, v{V_T2}, v{V_LL}")
    A(f"v_fmac_f32 v{V_MX}, v{V_T0}, v{V_T1}")
    A(f"v_rcp_f32 v{V_MX}, v{V_MX}")
    A("s_nop 0")
    A(f"v_mul_f32 v{V_T2}, v{V_T2}, v{V_MX}")
    A(f"v_mul_f32 v{V_T0}, v{V_T0}, v{V_MX}")
    for k in range(32):
        T = F + 4*(k % 4); Y = QS + 4*(k % 16)
        for e in range(4): A(f"v_accvgpr_read_b32 v{T+e}, a{OL+4*k+e}")
        A(f"s_waitcnt lgkmcnt({min(7, 31-k)})")
        for e in range(4): A(f"v_mul_f32 v{T+e}, v{T+e}, v{V_T2}")
        for e in range(4): A(f"v_fmac_f32 v{T+e}, v{Y+e}, v{V_T0}")
        if k + 8 < 32: A(f"ds_read_b128 {vr(QS+4*((k+8) % 16), 4)}, v{V_RD} offset:{(k+8)*1024}")
        A(f"v_cvt_pk_bf16_f32 v{QL+2*k}, v{T}, v{T+1}")
        A(f"v_cvt_pk_bf16_f32 v{QL+2*k+1}, v{T+2}, v{T+3}")
    A.label(f"L_{N}_cjoin")
    A("s_barrier")
    vm0 = len(A.L)
    A(f"s_cmp_ge_u32 s{S_H}, 14")
    A(f"s_cbranch_scc1 L_{N}_noH")
    srd(A, S_W, 52, 448*1792*2)
    A(f"v_lshrrev_b32 v{V_T0}, 4, v{V_LANE}")
    A(f"s_lshl_b32 s{S_T0}, s{S_WAVE}, 4")
    A(f"v_add_u32 v{V_T1}, s{S_T0}, v{V_T0}")
    A(f"v_mul_u32_u24 v{V_T1}, 3584, v{V_T1}")
    A(f"s_lshl_b32 s{S_T0}, s{S_H}, 8")
    A(f"v_add_u32 v{V_T1}, s{S_T0}, v{V_T1}")
    A(f"v_lshlrev_b32 v{V_T0}, 2, v{V_T0}")
    A(f"v_and_b32 v{V_T2}, 15, v{V_LANE}")
    A(f"v_xor_b32 v{V_T0}, v{V_T0}, v{V_T2}")
    A(f"v_lshl_add_u32 v{V_T1}, v{V_T0}, 4, v{V_T1}")
    for c in range(4):
        k = 4*c*3584 - c*1024
        A(f"v_add_u32 v{V_DO+c}, {k}, v{V_T1}")
    def w1_dma(c):
        L = [f"s_add_u32 m0, s{S_W4}, {c*16384}", f"s_mov_b32 s{S_SO}, {c*64*3584}"]
        for j in range(4):
            L.append(f"buffer_load_dwordx4 v{V_DO+j}, s[{S_W}:{S_W+3}], s{S_SO} offen offset:{j*1024} lds ;@H{c}")
        return L
    A(f"v_lshrrev_b32 v{V_T0}, 5, v{V_LANE}")
    A(f"v_lshlrev_b32 v{V_T0}, 3, v{V_T0}")
    A(f"s_lshl_b32 s{S_T0}, s{S_H}, 8")
    for g in range(16):
        A(f"buffer_load_dwordx2 v[{S+2*g}:{S+2*g+1}], v{V_T0}, s[{S_B}:{S_B+3}], s{S_T0} offen offset:{g*16} ;@bias")
    A(f"s_mul_i32 s{S_T1}, s{S_QB}, {28*1024}")
    if XN_OFF: A(f"s_add_u32 s{S_T1}, s{S_T1}, {XN_OFF}")
    for i in w1_dma(0): A(i)
    for i in xn_loads(0, 28, S_T1, "xh"): A(i)
    for c in range(1, 4):
        for i in w1_dma(c): A(i)
    read_bases(256, 8, 4, 0)
    A("WAITVM bias")
    for g in range(16):
        for e in range(2):
            A(f"v_lshlrev_b32 v{QS+4*g+2*e}, 16, v{S+2*g+e}")
            A(f"v_and_b32 v{QS+4*g+2*e+1}, 0xffff0000, v{S+2*g+e}")
    def h_reads(c, j, rc):
        ks, nb = j // 4, j % 4
        o = 16*ks*256
        return (f"ds_read_b64_tr_b16 {{0}}, v{rc + nb} offset:{o}", f"ds_read_b64_tr_b16 {{0}}, v{rc + nb} offset:{o + 4*256}")
    def h_mfma(c, j, fr):
        ks, nb = j // 4, j % 4
        kk = 4*c + ks
        acc = vr(QS + 16*nb, 16)
        return f"v_mfma_f32_32x32x16_bf16 {acc}, {fr}, {ar(4*kk, 4)}, {acc}"
    def h_bar(c):
        return [[x] for x in w1_dma(4 + c)] if c < 3 else []
    def h_pre(c, j):
        if j % 4 == 0:
            return [f"WAITVM xh{4*c + j//4}"]
        return []
    stream_gemm(7, 16, h_reads, h_mfma, lambda c: c, 16384, 4, h_bar, lambda c: f"H{c}", h_pre)
    A.resolve_vm(vm0)
    A("s_nop 7\ns_nop 3")
    for p in range(32):
        for e in range(2):
            A(f"v_max_f32 v{QS+2*p+e}, 0, v{QS+2*p+e}")
            A(f"v_mul_f32 v{QS+2*p+e}, v{QS+2*p+e}, v{QS+2*p+e}")
        A(f"v_cvt_pk_bf16_f32 v{S+p}, v{QS+2*p}, v{QS+2*p+1}")
    A("s_barrier")
    A.label(f"L_{N}_noH")
    stamp(A, 4, st_on)
    if st_on: A("s_waitcnt lgkmcnt(0)")
    for c in range(7):
        A(f"v_add_u32 v{V_T0}, {c*64}, v{V_LANE}")
        A(f"v_mul_u32_u24 v{V_T0}, 1171, v{V_T0}")
        A(f"v_lshrrev_b32 v{V_T0}, 17, v{V_T0}")
        A(f"v_and_b32 v{V_T0}, 1, v{V_T0}")
        A(f"v_lshlrev_b32 v{V_T0}, 6, v{V_T0}")
        A(f"v_xor_b32 v{V_DO+c}, v{V_T0}, v{V_L16 if c < 4 else V_L16B}")
    read_bases(896, 4, 2, 1)
    srd(A, S_W, 50, 4096*448*2)
    srd(A, S_B, 56, 1792*448*2)
    A(f"s_mul_i32 s{S_T0}, s{S_H}, {256*896}")
    A(f"s_add_u32 s{S_T0}, s{S_T0}, s{S_W7}")
    A(f"s_mul_i32 s{S_T1}, s{S_H}, {128*896}")
    A(f"s_add_u32 s{S_T1}, s{S_T1}, s{S_W7}")
    def wo_dma(c):
        sd, sb, cc = (S_W, S_T0, c) if c < 8 else (S_B, S_T1, c - 8)
        L = [[f"s_add_u32 m0, s{S_W7}, {(c % 5)*28672}", f"s_add_u32 s{S_SO}, s{sb}, {cc*28672}"]]
        for j in range(7):
            g = []
            if j == 4: g += ["s_add_u32 m0, m0, 4096", "s_nop 0"]
            g.append(f"buffer_load_dwordx4 v{V_DO+j}, s[{sd}:{sd+3}], s{S_SO} offen offset:{(j % 4)*1024} lds ;@O{c}")
            L.append(g)
        return L
    def o_reads(c, j, rc):
        ks, mb = j // 14, j % 14
        o = (mb >> 1)*128 + 16*ks*896
        return (f"ds_read_b64_tr_b16 {{0}}, v{rc + (mb & 1)} offset:{o}", f"ds_read_b64_tr_b16 {{0}}, v{rc + (mb & 1)} offset:{o + 8*896}")
    def o_mfma(c, j, fr):
        ks, mb = j // 14, j % 14
        kk = 2*c + ks
        b = vr(QL + 4*kk, 4) if kk < 16 else vr(S + 4*(kk - 16), 4)
        acc = ar(16*mb, 16)
        return f"v_mfma_f32_32x32x16_bf16 {acc}, {fr}, {b}, {'0' if kk == 0 else acc}"
    for nch, lab in ((12, "o12"), (8, "o8")):
        vm0 = len(A.L)
        if nch == 12:
            A(f"s_cmp_ge_u32 s{S_H}, 14")
            A(f"s_cbranch_scc1 L_{N}_o8")
        else:
            A.label(f"L_{N}_o8")
        for c in range(5):
            for g in wo_dma(c):
                for i in g: A(i)
        def o_bar(c):
            return wo_dma(c + 3) if (c >= 2 and c + 3 < nch) else []
        stream_gemm(nch, 28, o_reads, o_mfma, lambda c: c % 5, 28672, 2, o_bar, lambda c: f"O{c}")
        A.resolve_vm(vm0)
        if nch == 12: A(f"s_branch L_{N}_store")
    A.label(f"L_{N}_store")
    stamp(A, 5, st_on)
    A(f"s_mul_i32 s{S_T0}, s{S_QB}, {28*16*1024}")
    A(f"s_lshl_b32 s{S_T1}, s{S_H}, 10")
    A(f"s_add_u32 s{S_T0}, s{S_T0}, s{S_T1}")
    A(f"s_add_u32 s{S_T0}, s{S_T0}, {SLAB_OFF}")
    A("s_nop 7\ns_nop 3")
    for mb in range(14):
        T = QS + (mb % 2)*32
        for e in range(16): A(f"v_accvgpr_read_b32 v{T+e}, a{16*mb+e}")
        for e in range(8): A(f"v_cvt_pk_bf16_f32 v{T+16+e}, v{T+2*e}, v{T+2*e+1}")
        for t in range(2):
            A(f"s_add_u32 s{S_T1}, s{S_T0}, {(mb*2+t)*16384}")
            A(f"buffer_store_dwordx4 v[{T+16+4*t}:{T+16+4*t+3}], v{V_L16}, s[{S_WS}:{S_WS+3}], s{S_T1} offen")
    stamp_out(A, 7, st_on, S_WS, 0x10000)
    A.label(f"L_{N}_end")
    A("s_endpgm")
    return A

def gen_k3(name="red_kernel"):
    A = Asm()
    A(f".p2align 8\n.type {name},@function")
    A.label(name)
    A("s_cmp_ge_u32 s2, 448")
    A(f"s_cbranch_scc1 L_{name}_end")
    A("s_load_dwordx2 s[20:21], s[0:1], 0")
    A("s_load_dwordx4 s[24:27], s[0:1], 80")
    A("s_load_dwordx2 s[28:29], s[0:1], 104")
    A("v_and_b32 v1, 63, v0")
    A("v_lshrrev_b32 v2, 6, v0")
    A("s_lshl_b32 s3, s2, 2")
    A("v_readfirstlane_b32 s30, v2")
    A("v_lshlrev_b32 v2, 4, v1")
    A("s_add_u32 s30, s30, s3")
    A("s_mul_i32 s31, s30, 2341")
    A("s_lshr_b32 s31, s31, 16")
    A("s_mul_i32 s32, s31, 28")
    A("s_sub_u32 s32, s30, s32")
    A("s_waitcnt lgkmcnt(0)")
    srd(A, 4, 28, WS_BYTES)
    srd(A, 8, 20, 2048*448*2)
    srd(A, 12, 24, 448*2)
    srd(A, 16, 26, 2048*448*2)
    A("s_lshl_b32 s33, s30, 14")
    A(f"s_add_u32 s33, s33, {SLAB_OFF}")
    for h in range(16):
        if h % 4 == 0 and h: A("s_add_u32 s33, s33, 4096")
        A(f"buffer_load_dwordx4 v[{8+4*h}:{8+4*h+3}], v2, s[4:7], s33 offen offset:{(h % 4)*1024}")
    A("v_and_b32 v3, 31, v1")
    A("v_mul_u32_u24 v3, 896, v3")
    A("v_lshrrev_b32 v4, 5, v1")
    A("v_lshlrev_b32 v4, 3, v4")
    A("v_add_u32 v3, v3, v4")
    A("s_mul_i32 s34, s31, 32*896")
    A("s_lshl_b32 s35, s32, 5")
    A("s_add_u32 s34, s34, s35")
    A("buffer_load_dwordx2 v[72:73], v3, s[8:11], s34 offen")
    A("buffer_load_dwordx2 v[74:75], v3, s[8:11], s34 offen offset:16")
    A("buffer_load_dwordx2 v[76:77], v4, s[12:15], s35 offen")
    A("buffer_load_dwordx2 v[78:79], v4, s[12:15], s35 offen offset:16")
    for h in range(18):
        A(f"s_waitcnt vmcnt({19-h if h < 16 else (2 if h == 16 else 0)})")
        for e in range(4):
            src = 8 + 4*h + e
            if h == 0:
                A(f"v_lshlrev_b32 v{80+2*e}, 16, v{src}")
                A(f"v_and_b32 v{81+2*e}, 0xffff0000, v{src}")
            else:
                A(f"v_lshlrev_b32 v5, 16, v{src}")
                A(f"v_and_b32 v6, 0xffff0000, v{src}")
                A(f"v_add_f32 v{80+2*e}, v{80+2*e}, v5")
                A(f"v_add_f32 v{81+2*e}, v{81+2*e}, v6")
    for e in range(4): A(f"v_cvt_pk_bf16_f32 v{8+e}, v{80+2*e}, v{81+2*e}")
    A("buffer_store_dwordx2 v[8:9], v3, s[16:19], s34 offen")
    A("buffer_store_dwordx2 v[10:11], v3, s[16:19], s34 offen offset:16")
    A.label(f"L_{name}_end")
    A("s_endpgm")
    return A

if __name__ == "__main__":
    import sys
    from k1 import gen_k1
    st = len(sys.argv) > 1 and sys.argv[1] == "1"
    out = sys.argv[2] if len(sys.argv) > 2 else "full.s"
    A1 = gen_k1(st_on=st); A2 = gen_k2(st_on=st, abl=(sys.argv[3] if len(sys.argv) > 3 else "")); A3 = gen_k3()
    for a, n in ((A1, "k1"), (A2, "k2"), (A3, "k3")):
        errs = check(a.L, n)
        print("\n".join(errs[:40])); print(n, "hazard errs:", len(errs), "lines", len(a.L))
    hdr = open("parallel_sum__compressed_kv_cla__dense_activation_squared_relu__prompt.s.ref").read().split("; Override")[0]
    s = hdr + "; @launch kernel=kv_kernel grid=(256,1,1) block=(256,1,1) lds=131072\n" \
        + "; @launch kernel=attn_kernel grid=(256,1,1) block=(256,1,1) lds=163840\n" \
        + "; @launch kernel=red_kernel grid=(448,1,1) block=(256,1,1) lds=0\n" \
        + '.amdgcn_target "amdgcn-amd-amdhsa--gfx950"\n.text\n' + A1.text() + A2.text() + A3.text() \
        + kd("kv_kernel", 512, 256) + kd("attn_kernel", 512, 256) + kd("red_kernel", 88, 88)
    open(out, "w").write(s)
```

```python
from asmlib import *
from k1 import XN_OFF, KV_OFF, SLAB_OFF, WS_BYTES, srd, stamp, stamp_out, kd
import struct, math
def f32(x): return hex(struct.unpack("<I", struct.pack("<f", x))[0])
HST_OFF = 0x4000000

V_LANE=1; V_L16=2; V_L16B=3; V_RD=4; V_LS=5; V_LL=6; V_MX=7; V_T0=8; V_T1=9; V_THR=10; V_T2=11
V_DO=12
V_NM0=18; V_L16R=19
V_RB=20
V_T3=30; V_T4=31
F=32; S=64; E=80; NM=96; P=112; XB=120
OL=128
QS=0; QL=64; OS=128
S_WS=4; S_W=8; S_B=12; S_W1=16
S_WAVE=20; S_RR=21; S_ROLE=22; S_H=23; S_I=24; S_QB=25
S_PA=26; S_PB=27; S_DEL=28; S_REND=29; S_KP=30; S_VP=31; S_JK=32; S_JV=33; S_JTK=34; S_JTV=35
S_D=36; S_CNT=37; S_KVO=38; S_W4=39; S_T0=40; S_T1=41; S_T2=42; S_QBL=44; S_W2K=45
S_PQ=46; S_P1=47; S_PX=43
S_MK=60
NEG = f32(-1e30)
THR = f32(8.0)
D = 6
RING = 163840

def halfop(A, v, t, op):
    A(f"v_mov_b32 v{t}, v{v}")
    A("s_nop 1")
    A(f"v_permlane32_swap_b32 v{v}, v{t}")
    A("s_nop 1")
    A(f"{op} v{v}, v{v}, v{t}")

def max_tree(dst, t):
    L = [f"v_max3_f32 v{dst}, v{S}, v{S+1}, v{S+2}", f"v_max3_f32 v{t}, v{S+3}, v{S+4}, v{S+5}"]
    for k in range(6, 14, 4):
        L.append(f"v_max3_f32 v{dst}, v{dst}, v{S+k}, v{S+k+1}")
        L.append(f"v_max3_f32 v{t}, v{t}, v{S+k+2}, v{S+k+3}")
    L.append(f"v_max3_f32 v{dst}, v{dst}, v{S+14}, v{S+15}")
    L.append(f"v_max_f32 v{dst}, v{dst}, v{t}")
    return L

def gen_k2(name="attn_kernel", st_on=False, abl=""):
    A = Asm()
    N = name
    def flat(L):
        for g in L:
            for i in (g if isinstance(g, (list, tuple)) else [g]): A(i)
    def stmp(i):
        stamp(A, i, st_on)
        if st_on: A("s_waitcnt lgkmcnt(0)")
    A(f".p2align 8\n.type {name},@function")
    A.label(name)
    A("s_cmp_ge_u32 s2, 256")
    A(f"s_cbranch_scc1 L_{N}_end")
    stamp(A, 0, st_on)
    A("s_load_dwordx2 s[48:49], s[0:1], 16")
    A("s_load_dwordx2 s[50:51], s[0:1], 40")
    A("s_load_dwordx4 s[52:55], s[0:1], 56")
    A("s_load_dwordx2 s[56:57], s[0:1], 72")
    A("s_load_dwordx2 s[58:59], s[0:1], 104")
    A(f"v_and_b32 v{V_LANE}, 63, v0")
    A(f"v_lshrrev_b32 v{V_T0}, 6, v0")
    A(f"s_and_b32 s{S_T0}, s2, 7")
    A(f"v_readfirstlane_b32 s{S_WAVE}, v{V_T0}")
    A(f"s_lshr_b32 s{S_T1}, s2, 3")
    A(f"s_lshr_b32 s{S_I}, s{S_T1}, 1")
    A(f"s_and_b32 s{S_T1}, s{S_T1}, 1")
    A(f"s_lshl_b32 s{S_H}, s{S_T0}, 1")
    A(f"s_add_u32 s{S_H}, s{S_H}, s{S_T1}")
    A(f"s_and_b32 s{S_RR}, s{S_WAVE}, 1")
    A(f"s_lshr_b32 s{S_ROLE}, s{S_WAVE}, 1")
    A(f"s_lshl_b32 s{S_T0}, s{S_I}, 1")
    A(f"s_sub_u32 s{S_QBL}, 62, s{S_T0}")
    A(f"s_add_u32 s{S_QBL}, s{S_QBL}, s{S_RR}")
    A(f"s_add_u32 s{S_T1}, s{S_T0}, s{S_RR}")
    A(f"s_cmp_eq_u32 s{S_ROLE}, 0")
    A(f"s_cselect_b32 s{S_QB}, s{S_QBL}, s{S_T1}")
    A(f"s_lshl_b32 s{S_KVO}, s{S_WAVE}, 13")
    A(f"s_lshl_b32 s{S_W4}, s{S_WAVE}, 12")
    A(f"s_lshl_b32 s{S_W2K}, s{S_WAVE}, 11")
    A(f"s_add_u32 s{S_W2K}, s{S_W2K}, 16384")
    A(f"v_lshlrev_b32 v{V_L16}, 4, v{V_LANE}")
    A(f"v_add_u32 v{V_L16B}, 4096, v{V_L16}")
    A(f"s_lshl_b32 s{S_T0}, s{S_ROLE}, 14")
    A(f"v_add_u32 v{V_L16R}, s{S_T0}, v{V_L16}")
    A(f"v_lshrrev_b32 v{V_T0}, 5, v{V_LANE}")
    A(f"s_lshl_b32 s{S_T0}, s{S_WAVE}, 3")
    A(f"v_add_u32 v{V_T1}, s{S_T0}, v{V_T0}")
    A(f"v_lshlrev_b32 v{V_T1}, 13, v{V_T1}")
    A(f"s_lshl_b32 s{S_T1}, s{S_H}, 9")
    A(f"v_add_u32 v{V_T1}, s{S_T1}, v{V_T1}")
    A(f"v_lshlrev_b32 v{V_T0}, 2, v{V_T0}")
    A(f"v_and_b32 v{V_T2}, 31, v{V_LANE}")
    A(f"v_xor_b32 v{V_T0}, v{V_T0}, v{V_T2}")
    A(f"v_xor_b32 v{V_T2}, 8, v{V_T0}")
    A(f"v_lshlrev_b32 v{V_T0}, 4, v{V_T0}")
    A(f"v_lshlrev_b32 v{V_T2}, 4, v{V_T2}")
    for c in range(4):
        k = 2*c*8192 - c*1024
        A(f"v_add_u32 v{V_DO+c}, v{V_T1}, v{V_T0 if c % 2 == 0 else V_T2}")
        if k: A(f"v_add_u32 v{V_DO+c}, {k}, v{V_DO+c}")
    A(f"v_lshrrev_b32 v{V_T0}, 4, v{V_LANE}")
    A(f"v_add_u32 v{V_T1}, s{S_T0}, v{V_T0}")
    A(f"v_mul_u32_u24 v{V_T1}, 3584, v{V_T1}")
    A(f"v_lshlrev_b32 v{V_T0}, 2, v{V_T0}")
    A(f"v_and_b32 v{V_T2}, 15, v{V_LANE}")
    A(f"v_xor_b32 v{V_T0}, v{V_T0}, v{V_T2}")
    A(f"v_lshl_add_u32 v{V_DO+4}, v{V_T0}, 4, v{V_T1}")
    A(f"v_add_u32 v{V_DO+5}, {4*3584 - 1024}, v{V_DO+4}")
    A(f"s_mov_b32 s{S_PQ}, 0")
    A(f"s_lshl_b32 s{S_P1}, s{S_H}, 8")
    A(f"s_cmp_ge_u32 s{S_H}, 14")
    A(f"s_cselect_b32 s{S_P1}, 0x40000000, s{S_P1}")
    A(f"s_mul_i32 s{S_PX}, s{S_QB}, {28*1024}")
    if XN_OFF: A(f"s_add_u32 s{S_PX}, s{S_PX}, {XN_OFF}")
    A(f"v_lshrrev_b32 v{V_T0}, 5, v{V_LANE}")
    A(f"v_lshlrev_b32 v{V_T0}, 3, v{V_T0}")
    A(f"s_lshl_b32 s{S_T0}, s{S_H}, 8")
    A("s_waitcnt lgkmcnt(0)")
    srd(A, S_WS, 58, WS_BYTES)
    srd(A, S_W, 48, 448*4096*2)
    srd(A, S_W1, 52, 448*1792*2)
    srd(A, S_B, 54, 1792*2)
    def p1_dma(slot):
        L = [[f"s_add_u32 m0, s{S_W4}, {slot}", "s_nop 0", f"buffer_load_dwordx4 v{V_DO}, s[{S_W}:{S_W+3}], s{S_PQ} offen lds"]]
        for j in range(1, 4): L.append([f"buffer_load_dwordx4 v{V_DO+j}, s[{S_W}:{S_W+3}], s{S_PQ} offen offset:{j*1024} lds"])
        L.append([f"s_add_u32 m0, s{S_W2K}, {slot}", f"s_add_u32 s{S_PQ}, s{S_PQ}, {32*8192}", f"buffer_load_dwordx4 v{V_DO+4}, s[{S_W1}:{S_W1+3}], s{S_P1} offen lds"])
        L.append([f"buffer_load_dwordx4 v{V_DO+5}, s[{S_W1}:{S_W1+3}], s{S_P1} offen offset:1024 lds"])
        L.append(["s_add_u32 m0, m0, 8192", f"s_add_u32 s{S_P1}, s{S_P1}, {32*3584}", f"buffer_load_dwordx4 v{V_L16}, s[{S_WS}:{S_WS+3}], s{S_PX} offen lds"])
        L.append([f"buffer_load_dwordx4 v{V_L16}, s[{S_WS}:{S_WS+3}], s{S_PX} offen offset:1024 lds", f"s_add_u32 s{S_PX}, s{S_PX}, 2048"])
        return L
    flat(p1_dma("0"))
    if "P" not in abl:
        A(f"s_mul_i32 s{S_T1}, s{S_I}, 28")
        A(f"s_mul_i32 s{S_T2}, s{S_WAVE}, 7")
        A(f"s_add_u32 s{S_T1}, s{S_T1}, s{S_T2}")
        A(f"v_min_u32 v{V_T1}, 27, v{V_LANE}")
        A(f"v_lshrrev_b32 v{V_T2}, 2, v{V_T1}")
        A(f"v_add_u32 v{V_T2}, s{S_T1}, v{V_T2}")
        A(f"v_and_b32 v{V_T1}, 3, v{V_T1}")
        A(f"v_lshlrev_b32 v{V_T3}, 13, v{V_T2}")
        A(f"v_lshl_add_u32 v{V_T3}, v{V_T1}, 7, v{V_T3}")
        A(f"s_lshl_b32 s{S_T1}, s{S_H}, 9")
        A(f"buffer_load_dword v{V_T4}, v{V_T3}, s[{S_W}:{S_W+3}], s{S_T1} offen")
        A(f"v_mul_u32_u24 v{V_T3}, 3584, v{V_T2}")
        A(f"v_and_b32 v{V_T1}, 1, v{V_T1}")
        A(f"v_lshl_add_u32 v{V_T3}, v{V_T1}, 7, v{V_T3}")
        A(f"buffer_load_dword v{V_T4}, v{V_T3}, s[{S_W1}:{S_W1+3}], s{S_T0} offen")
        A(f"v_lshlrev_b32 v{V_T3}, 7, v{V_LANE}")
        for k in range(3):
            A(f"s_add_u32 s{S_T1}, s{S_PX}, {4096 + k*8192}")
            A(f"buffer_load_dword v{V_T4}, v{V_T3}, s[{S_WS}:{S_WS+3}], s{S_T1} offen")
    for g in range(16):
        A(f"buffer_load_dwordx2 v[{F+2*g}:{F+2*g+1}], v{V_T0}, s[{S_B}:{S_B+3}], s{S_T0} offen offset:{g*16}")
    flat(p1_dma("32768")); flat(p1_dma("65536"))
    def read_bases(dst, rowstride, hmul, nsets, xshift, add=0):
        A(f"v_lshrrev_b32 v{V_T0}, 2, v{V_LANE}")
        A(f"v_and_b32 v{V_T0}, 3, v{V_T0}")
        A(f"v_lshrrev_b32 v{V_T1}, 5, v{V_LANE}")
        A(f"v_mad_u32_u24 v{V_T1}, v{V_T1}, {hmul}, v{V_T0}")
        A(f"v_mul_u32_u24 v{V_T1}, {rowstride}, v{V_T1}")
        A(f"v_lshrrev_b32 v{V_T2}, 4, v{V_LANE}")
        A(f"v_and_b32 v{V_T2}, 1, v{V_T2}")
        A(f"v_lshl_add_u32 v{V_T1}, v{V_T2}, 5, v{V_T1}")
        A(f"v_and_b32 v{V_T2}, 3, v{V_LANE}")
        A(f"v_lshl_add_u32 v{V_T1}, v{V_T2}, 3, v{V_T1}")
        if add: A(f"v_add_u32 v{V_T1}, {add}, v{V_T1}")
        if xshift: A(f"v_lshrrev_b32 v{V_T0}, {xshift}, v{V_T0}")
        for p in range(nsets):
            A(f"v_xor_b32 v{V_T2}, {p}, v{V_T0}")
            A(f"v_lshl_add_u32 v{dst+p}, v{V_T2}, 6, v{V_T1}")
    read_bases(V_RB, 512, 8, 4, 0)
    read_bases(V_RB+4, 256, 8, 4, 0, 16384)
    A(f"s_add_u32 s{S_T0}, s{S_W2K}, 8192")
    A(f"v_add_u32 v{V_RB+8}, s{S_T0}, v{V_L16}")
    A(f"v_lshrrev_b32 v{V_T0}, 5, v{V_LANE}")
    A(f"v_lshlrev_b32 v{V_T0}, 2, v{V_T0}")
    A(f"v_and_b32 v{V_THR}, 31, v{V_LANE}")
    A(f"v_sub_u32 v{V_THR}, v{V_THR}, v{V_T0}")
    A(f"v_mov_b32 v{V_LS}, 0")
    A(f"v_mov_b32 v{V_LL}, 0")
    for r in range(128): A(f"v_accvgpr_write_b32 a{OS+r}, 0")
    for r in range(128): A(f"v_mov_b32 v{OL+r}, 0")
    A(f"s_lshl_b32 s{S_T0}, s{S_H}, 21")
    A(f"s_add_u32 s{S_T0}, s{S_T0}, {KV_OFF}")
    A(f"s_lshl_b32 s{S_T1}, s{S_RR}, 13")
    A(f"s_add_u32 s{S_KP}, s{S_T0}, s{S_T1}")
    A(f"s_add_u32 s{S_VP}, s{S_KP}, 16384")
    A(f"s_lshl_b32 s{S_T1}, s{S_I}, 16")
    A(f"s_add_u32 s{S_T1}, s{S_T1}, 65536")
    A(f"s_cmp_eq_u32 s{S_ROLE}, 0")
    A(f"s_cselect_b32 s{S_T1}, 1, s{S_T1}")
    A(f"s_add_u32 s{S_JK}, s{S_KP}, s{S_T1}")
    A(f"s_add_u32 s{S_JV}, s{S_VP}, s{S_T1}")
    A(f"s_add_u32 s{S_JTK}, s{S_KP}, {33*32768}")
    A(f"s_add_u32 s{S_JTV}, s{S_VP}, {33*32768}")
    A(f"s_mov_b32 s{S_REND}, {RING}")
    def kv_dma(isV, slot):
        p, j, jt = (S_VP, S_JV, S_JTV) if isV else (S_KP, S_JK, S_JTK)
        L = [[f"s_add_u32 m0, s{S_KVO}, {slot}", "s_nop 0", f"buffer_load_dwordx4 v{V_L16}, s[{S_WS}:{S_WS+3}], s{p} offen lds"]]
        for k in range(1, 4): L.append([f"buffer_load_dwordx4 v{V_L16}, s[{S_WS}:{S_WS+3}], s{p} offen offset:{k*1024} lds"])
        L[3].append("s_add_u32 m0, m0, 4096")
        L.append([f"buffer_load_dwordx4 v{V_L16B}, s[{S_WS}:{S_WS+3}], s{p} offen lds"])
        for k in range(1, 4): L.append([f"buffer_load_dwordx4 v{V_L16B}, s[{S_WS}:{S_WS+3}], s{p} offen offset:{k*1024} lds"])
        L[7] += [f"s_add_u32 s{p}, s{p}, 32768", f"s_cmp_eq_u32 s{p}, s{j}", f"s_cselect_b32 s{p}, s{jt}, s{p}"]
        if "d" in abl: L = [[i for i in g if not i.startswith("buffer")] for g in L]
        if "h" in abl: L[7][-3] = f"s_xor_b32 s{p}, s{p}, 0x18000"
        return L
    def nxt(d, s):
        return [f"s_add_u32 s{d}, s{s}, 32768", f"s_cmp_eq_u32 s{d}, s{S_REND}", f"s_cselect_b32 s{d}, 0, s{d}"]
    A("s_waitcnt vmcnt(16)")
    for g in range(16):
        for e in range(2):
            A(f"v_lshlrev_b32 v{S+4*g+2*e}, 16, v{F+2*g+e}")
            A(f"v_and_b32 v{S+4*g+2*e+1}, 0xffff0000, v{F+2*g+e}")
    stmp(1)
    XA = 0
    def p1_rd(j):
        ks, nb = j // 12, j % 12
        f = F + 4*(j % 8)
        if nb < 8: b, o, st = V_RB + (nb & 3), (nb >> 2)*256 + 16*ks*512, 4*512
        else: b, o, st = V_RB + 4 + (nb - 8), 16*ks*256, 4*256
        return [f"ds_read_b64_tr_b16 {vr(f,2)}, v{b} offset:{o} ;@f{j}", f"ds_read_b64_tr_b16 {vr(f+2,2)}, v{b} offset:{o+st} ;@f{j}"]
    def p1_xrd(ks): return f"ds_read_b128 {ar(XA+4*ks,4)}, v{V_RB+8} offset:{ks*1024} ;@x{ks}"
    def p1_body(dma_head, dma_tail, last=False):
        M = []
        for j in range(24):
            ks, nb = j // 12, j % 12
            acc = vr(OL + 16*nb, 16) if nb < 8 else vr(S + 16*(nb - 8), 16)
            M.append(f"v_mfma_f32_32x32x16_bf16 {acc}, {vr(F+4*(j%8),4)}, {ar(XA+4*ks,4)}, {acc}")
        W = Weave(M)
        for j in range(24):
            if j % 2 == 0: W.pre[j].append(f"WAITLDS f{j+1}")
            if j % 12 == 0: W.pre[j].append(f"WAITLDS x{j//12}")
            j2 = j + D
            if j2 == 24 and not last:
                W.post[j] += ["s_waitcnt vmcnt(16)", "s_barrier", p1_xrd(0)]
            if j2 < 24 or not last: W.post[j] += p1_rd(j2 % 24)
        W.post[2].append(p1_xrd(1))
        if not last:
            W.post[5] += [f"s_mov_b32 s{S_T2}, s{S_PA}", f"s_mov_b32 s{S_PA}, s{S_PB}"] if False else []
            W.post[9] += nxt(S_T0, S_PB) + [f"s_sub_u32 s{S_DEL}, s{S_T0}, s{S_PB}"]
            W.post[11].append(f"v_add_u32 v{V_RB+8}, s{S_DEL}, v{V_RB+8}")
            for p in range(4): W.post[14+p].append(f"v_add_u32 v{V_RB+p}, s{S_DEL}, v{V_RB+p}")
            for p in range(4): W.post[19+p].append(f"v_add_u32 v{V_RB+4+p}, s{S_DEL}, v{V_RB+4+p}")
            W.post[17] += [f"s_mov_b32 s{S_T2}, s{S_PA}", f"s_mov_b32 s{S_PA}, s{S_PB}", f"s_mov_b32 s{S_PB}, s{S_T0}"]
        if dma_tail: W.at(dma_tail, [1, 4, 7, 10, 13, 16])
        if dma_head: W.at(dma_head, [19, 22])
        return W.lines()
    A(f"s_mov_b32 s{S_T2}, {3*32768}")
    A(f"s_mov_b32 s{S_PA}, {4*32768}")
    A(f"s_mov_b32 s{S_PB}, 0")
    A("s_barrier")
    pre = [p1_xrd(0)]
    for j in range(D): pre += p1_rd(j)
    wl = p1_dma(f"s{S_T2}")
    for g in wl[:2]: pre += g
    pre, q0 = resolve_lds(pre, [])
    flat(pre)
    A(f"s_mov_b32 s{S_CNT}, 10")
    A(".p2align 3")
    A.label(f"L_{N}_p1")
    body, q1 = resolve_lds(p1_body(wl[:2], wl[2:]), q0)
    assert q1 == q0, (q0, q1)
    flat(body)
    A(f"s_sub_u32 s{S_CNT}, s{S_CNT}, 1")
    A(f"s_cmp_lg_u32 s{S_CNT}, 0")
    A(f"s_cbranch_scc1 L_{N}_p1")
    kK = kv_dma(False, f"s{S_T2}"); kV = kv_dma(True, f"s{S_T2}")
    for (h_, t_, last) in ((kK[:2], wl[2:], False), (kK[:2], kK[2:], False), (kV[:2], kK[2:], False), (None, kV[2:], True)):
        body, q1 = resolve_lds(p1_body(h_, t_, last), q0)
        flat(body)
    A("s_barrier")
    A(f"s_mov_b32 s{S_T0}, {f32(math.log2(math.e)/16.0)}")
    A(f"s_mov_b32 s{S_T1}, s{S_T0}")
    A(f"s_lshl_b32 s{S_T2}, s{S_RR}, 14")
    A(f"s_add_u32 s{S_T2}, s{S_T2}, {2*32768}")
    A(f"v_add_u32 v{V_T3}, s{S_T2}, v{V_L16}")
    A(f"s_lshl_b32 s{S_CNT}, s{S_ROLE}, 15")
    A(f"s_sub_u32 s{S_T2}, 32768, s{S_CNT}")
    A(f"v_add_u32 v{V_T4}, s{S_T2}, v{V_T3}")
    A("s_nop 3")
    for k in range(16):
        b = OL + 8*k
        for e in range(4): A(f"v_pk_mul_f32 v[{b+2*e}:{b+2*e+1}], v[{b+2*e}:{b+2*e+1}], s[{S_T0}:{S_T1}]")
        for e in range(4): A(f"v_cvt_pk_bf16_f32 v{F+4*(k%4)+e}, v{b+2*e}, v{b+2*e+1}")
        A(f"ds_write_b128 v{V_T4}, {vr(F+4*(k%4),4)} offset:{k*1024}")
    A(f"s_lshl_b32 s{S_T2}, s2, 15")
    A(f"s_add_u32 s{S_T2}, s{S_T2}, s{S_KVO}")
    A(f"s_add_u32 s{S_PX}, s{S_T2}, {HST_OFF}")
    for k in range(8):
        b = S + 8*k; t = F + 16 + 4*(k % 4)
        for e in range(8): A(f"v_max_f32 v{b+e}, 0, v{b+e}")
        for e in range(4): A(f"v_pk_mul_f32 v[{b+2*e}:{b+2*e+1}], v[{b+2*e}:{b+2*e+1}], v[{b+2*e}:{b+2*e+1}]")
        for e in range(4): A(f"v_cvt_pk_bf16_f32 v{t+e}, v{b+2*e}, v{b+2*e+1}")
        A(f"buffer_store_dwordx4 {vr(t,4)}, v{V_L16 if k < 4 else V_L16B}, s[{S_WS}:{S_WS+3}], s{S_PX} offen offset:{(k%4)*1024}")
    A("s_waitcnt lgkmcnt(0)")
    A("s_barrier")
    for k in range(16): A(f"ds_read_b128 {ar(QL+4*k,4)}, v{V_T3} offset:{32768 + k*1024}")
    for k in range(16): A(f"ds_read_b128 {ar(QS+4*k,4)}, v{V_T3} offset:{k*1024}")
    for r in range(16): A(f"v_mov_b32 v{NM+r}, 0")
    A(f"v_mov_b32 v{V_NM0}, 0")
    for r in range(64): A(f"v_mov_b32 v{OL+r}, 0")
    A(f"s_add_u32 s{S_D}, s{S_QB}, 1")
    A("s_waitcnt lgkmcnt(0)")
    if "L" not in abl: stmp(2)
    DA = 8
    def frd(m16): return f"ds_read_b128 {vr(F + 4*(m16 % 8), 4)}, v{V_RD} offset:{m16*1024} ;@f{m16}"
    def bar_open(a, b, rd):
        L = ["s_waitcnt vmcnt(16)", "s_barrier" if "b" not in abl else "s_nop 0"]
        if rd == "dyn": L += [f"s_add_u32 s{S_T0}, s{a}, s{S_RO}", f"v_add_u32 v{V_RD}, s{S_T0}, v{V_L16}"]
        else: L += [f"v_add_u32 v{V_RD}, s{a}, v{V_L16R if rd == 'own' else V_L16}"]
        return L
    def ptr_adv(a, b): return [f"s_mov_b32 s{S_T2}, s{a}"] + nxt(a, b)
    def half(M, a, b, tail, head, fill, rd="own", last=False):
        W = Weave(M)
        for m in range(16):
            if m % 4 == 0: W.pre[m].append(f"WAITLDS f{m+3}")
            m2 = m + DA
            if m2 == 16 and not last: W.post[m] += bar_open(a, b, rd)
            if m2 < 16 or not last: W.post[m].append(frd(m2 % 16))
        if not last:
            pa = ptr_adv(a, b)
            W.post[4] += pa[:1]; W.post[6] += pa[1:]
        if tail: W.at(tail, [1, 3, 5, 7])
        if head: W.at(head, [9, 11, 13, 15])
        fill(W)
        return W
    def qk(q):
        return [f"v_mfma_f32_32x32x16_bf16 {vr(S,16)}, {vr(F+4*(m%8),4)}, {ar(q+4*m,4)}, {vr(NM,16) if m == 0 else vr(S,16)}" for m in range(16)]
    def oreg(o, b): return vr(OL+16*b, 16) if o == "L" else ar(OS+16*b, 16)
    def pv(o):
        return [f"v_mfma_f32_32x32x16_bf16 {oreg(o,m%8)}, {vr(F+4*(m%8),4)}, {vr(P+4*(m//8),4)}, {oreg(o,m%8)}" for m in range(16)]
    def sumcvt(l):
        L = []
        for k in range(8):
            L.append(f"v_add_f32 v{l}, v{l}, v{E+2*k}")
            L.append(f"v_cvt_pk_bf16_f32 v{P+k}, v{E+2*k}, v{E+2*k+1}")
            L.append(f"v_add_f32 v{l}, v{l}, v{E+2*k+1}")
        return L if "v" not in abl else []
    def f_sum(l):
        def f(W):
            if sumcvt(l): W.spread(sumcvt(l), 0, 15)
        return f
    def f_exp(W, extra=None):
        if "v" in abl: return
        W.spread(max_tree(V_MX, V_T0), 3, 11)
        W.spread([f"v_exp_f32 v{E+k}, v{S+k}" for k in range(16)], 3, 16)
        W.post[12].append(f"v_cmp_lt_f32 vcc, {THR}, v{V_MX}")
        if extra: W.post[0] += extra
    pm_n = [0]
    def premask():
        lab = f"L_{N}_pm{pm_n[0]}"; pm_n[0] += 1
        A(f"s_sub_i32 s{S_D}, s{S_D}, 1")
        A(f"s_cmp_le_i32 s{S_D}, 0")
        A(f"s_cbranch_scc0 {lab}")
        A(f"s_lshl_b32 s{S_T0}, s{S_D}, 5")
        A(f"v_add_u32 v{V_T1}, s{S_T0}, v{V_THR}")
        A(f"v_mov_b32 v{V_T2}, {NEG}")
        A("s_nop 3")
        prs = (60, 62, 96, 98)
        for g in range(4):
            for c in range(4): A(f"v_cmp_gt_i32 s[{prs[c]}:{prs[c]+1}], {8*g + c}, v{V_T1}")
            for c in range(4): A(f"v_cndmask_b32 v{NM+4*g+c}, v{NM+4*g+c}, v{V_T2}, s[{prs[c]}:{prs[c]+1}]")
        A("s_nop 1")
        A.label(lab)
    def nodma(L): return [[i for i in g if not i.startswith(("buffer", "s_nop"))] for g in L]
    HK, TK = kK[:4], kK[4:]; HV, TV = kV[:4], kV[4:]
    S_RO = S_DEL
    A(f"s_mov_b32 s{S_PA}, {2*32768}")
    A(f"s_mov_b32 s{S_PB}, {3*32768}")
    pre = ptr_adv(S_PA, S_PB) + bar_open(S_PA, S_PB, "own")
    for m in range(DA): pre.append(frd(m))
    for g in HK: pre += g
    pre, qa = resolve_lds(pre, [])
    flat(pre)
    def emit(lines):
        l2, q = resolve_lds(lines, qa)
        flat(l2)
        return q
    def chk(slow, ret):
        if abl in ("", "L"): A(f"s_cbranch_vccnz {slow}")
        A.label(ret)
    def hot(lab, q, o, l, slow, ret, shared):
        f = nodma if shared else (lambda x: x)
        rd = "x" if shared else "own"
        h1 = half(qk(q), S_PA, S_PB, f(TV), f(HK), f_sum(l), rd).lines()
        h2 = half(pv(o), S_PB, S_PA, f(TK), f(HV), lambda W: f_exp(W, ["s_nop 1"] if shared else None), rd).lines()
        l1, qq = resolve_lds(h1, qa); assert qq == qa
        l2, qq = resolve_lds(h2, qa); assert qq == qa
        assert l1[0].startswith("s_waitcnt") and l1[1].startswith("v_mfma")
        flat(l1[:2])
        A(".p2align 3")
        A.label(lab)
        flat(l1[2:]); flat(l2)
        chk(slow, ret)
        A(f"s_sub_u32 s{S_CNT}, s{S_CNT}, 1")
        flat(l1[:2])
        A(f"s_cbranch_scc0 {lab}")
    def cold(q, o, l, slow, ret, rd1, rd2, resetnm=False, extra=None):
        if resetnm:
            for r in range(16): A(f"v_mov_b32 v{NM+r}, 0")
            A(f"v_mov_b32 v{V_NM0}, 0")
            A(f"s_sub_u32 s{S_D}, s{S_QBL}, 32")
        premask()
        emit(half(qk(q), S_PA, S_PB, TV, HK, f_sum(l), rd1).lines())
        emit(half(pv(o), S_PB, S_PA, TK, HV, lambda W: f_exp(W, extra), rd2).lines())
        if slow is not None: chk(slow, ret)
    def slowpath(lab, rets, o, l, first):
        for k, (e, r) in enumerate(rets):
            A.label(e)
            A(f"s_mov_b32 s{S_T1}, {k}")
            if k + 1 < len(rets): A(f"s_branch {lab}")
        A.label(lab)
        if first:
            for i in max_tree(V_MX, V_T0): A(i)
        halfop(A, V_MX, V_T0, "v_max_f32")
        if not first:
            A(f"v_max_f32 v{V_MX}, 0, v{V_MX}")
            A(f"v_exp_f32 v{V_T1}, -v{V_MX}")
            A("s_nop 7")
            A(f"v_mul_f32 v{l}, v{l}, v{V_T1}")
            if o == "L":
                for r in range(128): A(f"v_mul_f32 v{OL+r}, v{OL+r}, v{V_T1}")
            else:
                for r in range(0, 128, 4):
                    for e in range(4): A(f"v_accvgpr_read_b32 v{E+e}, a{OS+r+e}")
                    for e in range(4): A(f"v_mul_f32 v{E+e}, v{E+e}, v{V_T1}")
                    for e in range(4): A(f"v_accvgpr_write_b32 a{OS+r+e}, v{E+e}")
        for r in range(16):
            A(f"v_sub_f32 v{S+r}, v{S+r}, v{V_MX}")
            A(f"v_sub_f32 v{NM+r}, v{NM+r}, v{V_MX}")
            A(f"v_exp_f32 v{E+r}, v{S+r}")
        A(f"v_sub_f32 v{V_NM0}, v{V_NM0}, v{V_MX}")
        for k, (e, r) in enumerate(rets[:-1]):
            A(f"s_cmp_eq_u32 s{S_T1}, {k}")
            A(f"s_cbranch_scc1 {r}")
        A(f"s_branch {rets[-1][1]}")
    zer = [f"v_mov_b32 v{OL+r}, 0" for r in range(64, 128)]
    premask()
    A(f"s_cmp_eq_u32 s{S_ROLE}, 0")
    A(f"s_cbranch_scc0 L_{N}_Ystart")
    emit(half(qk(QL), S_PB, S_PA, TK, HV, lambda W: W.spread(zer, 0, 16)).lines())
    A(f"s_mov_b32 s{S_CNT}, 32")
    if "L" in abl: stmp(2)
    A("s_nop 7")
    A(f"s_branch L_{N}_eFB")
    A.label(f"L_{N}_Ystart")
    emit(half(qk(QS), S_PB, S_PA, TK, HV, lambda W: W.spread(zer, 0, 16)).lines())
    A("s_nop 7")
    A(f"s_branch L_{N}_eFA")
    A.label(f"L_{N}_segA")
    A(f"s_lshl_b32 s{S_CNT}, s{S_I}, 1")
    A(f"s_cmp_eq_u32 s{S_I}, 0")
    A(f"s_cbranch_scc1 L_{N}_coldA2")
    A(f"s_sub_u32 s{S_CNT}, s{S_CNT}, 1")
    A(f"s_sub_i32 s{S_D}, s{S_D}, s{S_CNT}")
    A(f"s_sub_u32 s{S_CNT}, s{S_CNT}, 1")
    hot(f"L_{N}_hotA", QS, "S", V_LS, f"L_{N}_eA0", f"L_{N}_rA0", True)
    A(f"s_mov_b32 s{S_RO}, 0")
    A(f"s_branch L_{N}_coldA")
    A.label(f"L_{N}_coldA2")
    A(f"s_mov_b32 s{S_RO}, 16384")
    A.label(f"L_{N}_coldA")
    cold(QS, "S", V_LS, f"L_{N}_eA1", f"L_{N}_rA1", "x", "dyn")
    A(f"s_cmp_eq_u32 s{S_RO}, 0")
    A(f"s_cbranch_scc1 L_{N}_coldA2")
    cold(QL, "S", V_LS, None, None, "x", "own", resetnm=True)
    A(f"s_lshl_b32 s{S_T0}, s{S_I}, 1")
    A(f"s_sub_u32 s{S_CNT}, 30, s{S_T0}")
    A(f"s_branch L_{N}_eFB")
    slowpath(f"L_{N}_spA", [(f"L_{N}_eA0", f"L_{N}_rA0"), (f"L_{N}_eA1", f"L_{N}_rA1")], "S", V_LS, False)
    slowpath(f"L_{N}_spB", [(f"L_{N}_eB0", f"L_{N}_rB0"), (f"L_{N}_eB1", f"L_{N}_rB1")], "L", V_LL, False)
    slowpath(f"L_{N}_spF", [(f"L_{N}_eFA", f"L_{N}_segA"), (f"L_{N}_eFB", f"L_{N}_segB")], None, None, True)
    A.label(f"L_{N}_segB")
    A(f"s_cmp_eq_u32 s{S_CNT}, 0")
    A(f"s_cbranch_scc1 L_{N}_tail")
    A(f"s_cmp_eq_u32 s{S_CNT}, 2")
    A(f"s_cbranch_scc1 L_{N}_coldB0")
    A(f"s_sub_u32 s{S_CNT}, s{S_CNT}, 2")
    A(f"s_sub_i32 s{S_D}, s{S_D}, s{S_CNT}")
    A(f"s_sub_u32 s{S_CNT}, s{S_CNT}, 1")
    hot(f"L_{N}_hotB", QL, "L", V_LL, f"L_{N}_eB0", f"L_{N}_rB0", False)
    A.label(f"L_{N}_coldB0")
    A(f"s_mov_b32 s{S_CNT}, 1")
    srd(A, S_W, 50, 4096*448*2)
    srd(A, S_W1, 56, 1792*448*2)
    A(f"s_lshl_b32 s{S_T0}, s{S_H}, 4")
    A(f"s_add_u32 s{S_T0}, s{S_T0}, s{S_I}")
    A(f"s_mul_i32 s{S_PQ}, s{S_T0}, 14336")
    A(f"s_lshr_b32 s{S_P1}, s{S_PQ}, 1")
    A(f"s_mul_i32 s{S_T0}, s{S_RR}, 7168")
    A(f"s_add_u32 s{S_PQ}, s{S_PQ}, s{S_T0}")
    A(f"v_lshlrev_b32 v{V_T3}, 7, v{V_LANE}")
    A(f"v_min_u32 v{V_T3}, 7040, v{V_T3}")
    A(f"buffer_load_dword v{V_T4}, v{V_T3}, s[{S_W}:{S_W+3}], s{S_PQ} offen")
    A(f"buffer_load_dword v{V_T4}, v{V_T3}, s[{S_W1}:{S_W1+3}], s{S_P1} offen")
    A.label(f"L_{N}_coldB")
    cold(QL, "L", V_LL, f"L_{N}_eB1", f"L_{N}_rB1", "own", "own")
    A(f"s_sub_u32 s{S_CNT}, s{S_CNT}, 1")
    A(f"s_cbranch_scc0 L_{N}_coldB")
    A.label(f"L_{N}_tail")
    if "L" in abl: stmp(3)
    flat(sumcvt(V_LL))
    halfop(A, V_LL, V_T0, "v_add_f32")
    halfop(A, V_LS, V_T0, "v_add_f32")
    A(f"v_lshrrev_b32 v{V_T0}, 3, v{V_LANE}")
    A(f"v_mul_u32_u24 v{V_T0}, 896, v{V_T0}")
    A(f"v_lshrrev_b32 v{V_T1}, 2, v{V_LANE}")
    A(f"v_and_b32 v{V_T1}, 4, v{V_T1}")
    A(f"v_and_b32 v{V_T2}, 7, v{V_LANE}")
    A(f"v_xor_b32 v{V_T1}, v{V_T1}, v{V_T2}")
    A(f"v_lshl_add_u32 v{V_DO}, v{V_T1}, 4, v{V_T0}")
    for c in range(1, 4): A(f"v_add_u32 v{V_DO+c}, {c*(7168-1024)}, v{V_DO}")
    srd(A, S_W, 50, 4096*448*2)
    srd(A, S_W1, 56, 1792*448*2)
    A(f"s_lshl_b32 s{S_T0}, s{S_H}, 8")
    A(f"s_lshl_b32 s{S_T1}, s{S_WAVE}, 6")
    A(f"s_add_u32 s{S_T0}, s{S_T0}, s{S_T1}")
    A(f"s_mul_i32 s{S_PQ}, s{S_T0}, 896")
    A(f"s_lshr_b32 s{S_P1}, s{S_PQ}, 1")
    A(f"s_add_u32 s{S_W2K}, s{S_W4}, 32768")
    def o_dma(slot):
        L = []
        for c in range(12):
            g = []
            if c == 0: g += [f"s_add_u32 m0, s{S_KVO}, {slot}", "s_nop 0"]
            if c == 4: g += ["s_add_u32 m0, m0, 4096", f"s_add_u32 s{S_DEL}, s{S_PQ}, {4*7168}"]
            if c == 8: g += [f"s_add_u32 m0, s{S_W2K}, {slot}", f"s_add_u32 s{S_PQ}, s{S_PQ}, 128"]
            sd, so = (S_W, S_PQ if c < 4 else S_DEL) if c < 8 else (S_W1, S_P1)
            g.append(f"buffer_load_dwordx4 v{V_DO+(c%4)}, s[{sd}:{sd+3}], s{so} offen offset:{(c%4)*1024} lds")
            if c == 11: g.append(f"s_add_u32 s{S_P1}, s{S_P1}, 128")
            L.append(g)
        return L
    A(f"s_lshl_b32 s{S_T0}, s{S_WAVE}, 9")
    A(f"s_add_u32 s{S_T0}, s{S_T0}, 147456")
    A(f"v_lshlrev_b32 v{V_T2}, 3, v{V_LANE}")
    A(f"v_add_u32 v{V_T3}, s{S_T0}, v{V_T2}")
    A(f"v_xor_b32 v{V_T4}, 1024, v{V_T3}")
    A(f"v_mov_b32 v{V_T0}, v{V_NM0}")
    A(f"v_mov_b32 v{V_T1}, v{V_LL}")
    A("s_waitcnt vmcnt(0) lgkmcnt(0)")
    A("s_barrier")
    A(f"ds_write_b64 v{V_T3}, v[{V_T0}:{V_T1}]")
    A(f"v_mov_b32 v{V_RD}, v{V_L16R}")
    pre = [frd(m) for m in range(DA)]
    pre, qt = resolve_lds(pre, [])
    flat(pre)
    hl = [f"buffer_load_dwordx4 {vr(S+4*k,4)}, v{V_L16 if k < 4 else V_L16B}, s[{S_WS}:{S_WS+3}], s{S_PX} offen offset:{(k%4)*1024}" for k in range(8)]
    l2, _ = resolve_lds(half(pv("L"), None, None, None, None, lambda W: W.spread(o_dma("98304"), 0, 16), last=True).lines(), qt)
    flat(l2)
    flat(hl)
    if "L" not in abl: stmp(3)
    A("s_barrier")
    A(f"s_lshl_b32 s{S_T0}, s{S_RR}, 15")
    A(f"s_add_u32 s{S_T0}, s{S_T0}, 32768")
    A(f"v_add_u32 v{V_RD}, s{S_T0}, v{V_L16}")
    A(f"s_cmp_eq_u32 s{S_ROLE}, 0")
    A(f"s_cbranch_scc1 L_{N}_cX")
    A("s_nop 4")
    for k in range(32): A(f"ds_write_b128 v{V_RD}, {vr(OL+4*k, 4)} offset:{k*1024}")
    A(f"v_rcp_f32 v{V_T0}, v{V_LS}")
    A("s_waitcnt lgkmcnt(0)")
    A("s_barrier")
    A(f"v_mov_b32 v{V_T1}, v{V_T0}")
    for k in range(32):
        T = F + 4*(k % 4)
        for e in range(4): A(f"v_accvgpr_read_b32 v{T+e}, a{OS+4*k+e}")
        for e in range(2): A(f"v_pk_mul_f32 v[{T+2*e}:{T+2*e+1}], v[{T+2*e}:{T+2*e+1}], v[{V_T0}:{V_T1}]")
        A(f"v_cvt_pk_bf16_f32 v{OL+2*k}, v{T}, v{T+1}")
        A(f"v_cvt_pk_bf16_f32 v{OL+2*k+1}, v{T+2}, v{T+3}")
    A(f"s_branch L_{N}_cjoin")
    A.label(f"L_{N}_cX")
    A(f"ds_read_b64 v[{V_T0}:{V_T1}], v{V_T4}")
    A("s_waitcnt lgkmcnt(0)")
    A(f"v_min_f32 v{V_MX}, v{V_NM0}, v{V_T0}")
    A(f"v_sub_f32 v{V_T3}, v{V_MX}, v{V_NM0}")
    A(f"v_sub_f32 v{V_T0}, v{V_MX}, v{V_T0}")
    A(f"v_exp_f32 v{V_T3}, v{V_T3}")
    A(f"v_exp_f32 v{V_T0}, v{V_T0}")
    A("s_nop 0")
    A(f"v_mul_f32 v{V_MX}, v{V_T3}, v{V_LL}")
    A(f"v_fmac_f32 v{V_MX}, v{V_T0}, v{V_T1}")
    A(f"v_rcp_f32 v{V_MX}, v{V_MX}")
    A("s_nop 0")
    A(f"v_mul_f32 v{V_T3}, v{V_T3}, v{V_MX}")
    A(f"v_mul_f32 v{V_T0}, v{V_T0}, v{V_MX}")
    A(f"v_mov_b32 v{V_T4}, v{V_T3}")
    A(f"v_mov_b32 v{V_T1}, v{V_T0}")
    for k in range(64): A(f"v_pk_mul_f32 v[{OL+2*k}:{OL+2*k+1}], v[{OL+2*k}:{OL+2*k+1}], v[{V_T3}:{V_T4}]")
    A("s_barrier")
    for k in range(8): A(f"ds_read_b128 {vr(F+4*k, 4)}, v{V_RD} offset:{k*1024}")
    for k in range(32):
        Y = F + 4*(k % 8); b = OL + 4*k
        A(f"s_waitcnt lgkmcnt({min(7, 31-k)})")
        for e in range(2): A(f"v_pk_fma_f32 v[{b+2*e}:{b+2*e+1}], v[{Y+2*e}:{Y+2*e+1}], v[{V_T0}:{V_T1}], v[{b+2*e}:{b+2*e+1}]")
        if k + 8 < 32: A(f"ds_read_b128 {vr(Y, 4)}, v{V_RD} offset:{(k+8)*1024}")
        A(f"v_cvt_pk_bf16_f32 v{OL+2*k}, v{b}, v{b+1}")
        A(f"v_cvt_pk_bf16_f32 v{OL+2*k+1}, v{b+2}, v{b+3}")
    A.label(f"L_{N}_cjoin")
    read_bases(V_RB, 128, 4, 2, 1, 98304)
    A("s_waitcnt vmcnt(0)")
    A("s_barrier")
    stmp(4)
    AC0 = OL + 64; AC1 = OL + 80; PK = OL + 96
    flat(o_dma("0"));
    A(f"s_mul_i32 s{S_T0}, s{S_QB}, {28*16*1024}")
    A(f"s_lshl_b32 s{S_T1}, s{S_H}, 10")
    A(f"s_add_u32 s{S_T0}, s{S_T0}, s{S_T1}")
    A(f"s_add_u32 s{S_KP}, s{S_T0}, {SLAB_OFF}")
    A(f"s_mov_b32 s{S_VP}, 0x40000000")
    A(f"s_mov_b32 s{S_PB}, 98304")
    A(f"s_mov_b32 s{S_T2}, 49152")
    A(f"s_mov_b32 s{S_REND}, 147456")
    def o_rd(j):
        p, kk = j // 24, j % 24
        f = F + 4*(j % 8)
        o = kk*16*128
        return [f"ds_read_b64_tr_b16 {vr(f,2)}, v{V_RB+p} offset:{o} ;@f{j}", f"ds_read_b64_tr_b16 {vr(f+2,2)}, v{V_RB+p} offset:{o+8*128} ;@f{j}"]
    def o_store(ac, sp):
        L = [f"v_cvt_pk_bf16_f32 v{PK+e}, v{ac+2*e}, v{ac+2*e+1}" for e in range(8)]
        L.append(f"buffer_store_dwordx4 {vr(PK,4)}, v{V_L16}, s[{S_WS}:{S_WS+3}], s{sp} offen")
        L.append([f"s_add_u32 s{S_T1}, s{sp}, 16384", f"buffer_store_dwordx4 {vr(PK+4,4)}, v{V_L16}, s[{S_WS}:{S_WS+3}], s{S_T1} offen"])
        return L
    M = []
    for j in range(48):
        p, kk = j // 24, j % 24
        b = vr(OL + 4*kk, 4) if kk < 16 else vr(S + 4*(kk - 16), 4)
        acc = vr(AC1 if p else AC0, 16)
        M.append(f"v_mfma_f32_32x32x16_bf16 {acc}, {vr(F+4*(j%8),4)}, {b}, {'0' if kk == 0 else acc}")
    W = Weave(M)
    for j in range(48):
        if j % 2 == 0: W.pre[j].append(f"WAITLDS f{j+1}")
        j2 = j + D
        if j2 == 48: W.post[j] += ["s_waitcnt vmcnt(16)", "s_barrier"]
        W.post[j] += o_rd(j2 % 48)
    W.spread(o_store(AC1, S_VP), 5, 15)
    W.spread(o_store(AC0, S_KP), 29, 39)
    W.at(o_dma(f"s{S_T2}"), [1, 4, 7, 10, 16, 19, 22, 25, 28, 33, 36, 40])
    W.post[20] += [f"s_add_u32 s{S_T0}, s{S_PB}, 49152", f"s_cmp_eq_u32 s{S_T0}, s{S_REND}", f"s_cselect_b32 s{S_T0}, 0, s{S_T0}"]
    W.post[21] += [f"s_sub_u32 s{S_JK}, s{S_T0}, s{S_PB}"]
    W.post[23] += [f"v_add_u32 v{V_RB}, s{S_JK}, v{V_RB}"]
    W.post[43] += [f"v_add_u32 v{V_RB+1}, s{S_JK}, v{V_RB+1}", f"s_mov_b32 s{S_T2}, s{S_PB}", f"s_mov_b32 s{S_PB}, s{S_T0}"]
    W.post[44] += [f"s_add_u32 s{S_VP}, s{S_KP}, 32768", f"s_add_u32 s{S_KP}, s{S_KP}, 65536"]
    W.post[46] += [f"s_cmp_ge_u32 s{S_CNT}, 4", f"s_cselect_b32 s{S_PQ}, 0x40000000, s{S_PQ}", f"s_cselect_b32 s{S_P1}, 0x40000000, s{S_P1}"]
    W.post[47] += [f"s_add_u32 s{S_CNT}, s{S_CNT}, 1", f"s_cmp_lt_u32 s{S_CNT}, 7"]
    pre = []
    for j in range(D): pre += o_rd(j)
    pre, qo = resolve_lds(pre, [])
    flat(pre)
    A(f"s_mov_b32 s{S_CNT}, 0")
    A(".p2align 3")
    A.label(f"L_{N}_p5")
    l2, q1 = resolve_lds(W.lines(), qo)
    assert q1 == qo
    flat(l2)
    A(f"s_cbranch_scc1 L_{N}_p5")
    stamp(A, 5, st_on)
    A("s_nop 7\ns_nop 3")
    flat(o_store(AC1, S_VP))
    stamp_out(A, 7, st_on, S_WS, 0x10000)
    A.label(f"L_{N}_end")
    A("s_endpgm")
    return A

if __name__ == "__main__":
    import sys
    from g1 import gen_k1
    from k2 import gen_k3
    st = len(sys.argv) > 1 and sys.argv[1] == "1"
    out = sys.argv[2] if len(sys.argv) > 2 else "full.s"
    A1 = gen_k1(st_on=st); A2 = gen_k2(st_on=st, abl=(sys.argv[3] if len(sys.argv) > 3 else "")); A3 = gen_k3()
    for a, n in ((A1, "k1"), (A2, "k2"), (A3, "k3")):
        errs = check(a.L, n)
        print("\n".join(errs[:40])); print(n, "hazard errs:", len(errs), "lines", len(a.L))
    hdr = open("parallel_sum__compressed_kv_cla__dense_activation_squared_relu__prompt.s.ref").read().split("; Override")[0]
    s = hdr + "; @launch kernel=kv_kernel grid=(256,1,1) block=(256,1,1) lds=163840\n" \
        + "; @launch kernel=attn_kernel grid=(256,1,1) block=(256,1,1) lds=163840\n" \
        + "; @launch kernel=red_kernel grid=(448,1,1) block=(256,1,1) lds=0\n" \
        + '.amdgcn_target "amdgcn-amd-amdhsa--gfx950"\n.text\n' + A1.text() + A2.text() + A3.text() \
        + kd("kv_kernel", 512, 256) + kd("attn_kernel", 512, 256) + kd("red_kernel", 88, 88)
    open(out, "w").write(s)
```

```python
import subprocess, re, tempfile, os
from asmlib import parse
LL = "bin/"
def sizes_of(lines):
    body = [l for l in lines if not l.startswith(".p2align")]
    src = '.amdgcn_target "amdgcn-amd-amdhsa--gfx950"\n.text\n' + "\n".join(body) + "\n"
    d = tempfile.mkdtemp()
    open(d + "/a.s", "w").write(src)
    subprocess.run([LL + "clang", "-x", "assembler", "-target", "amdgcn-amd-amdhsa", "-mcpu=gfx950", "-c", d + "/a.s", "-o", d + "/a.o"], check=True)
    out = subprocess.run([LL + "llvm-objdump", "-d", "--mcpu=gfx950", d + "/a.o"], capture_output=True, text=True).stdout
    sz = []
    for ln in out.splitlines():
        m = re.search(r"// [0-9A-F]{12}: ((?:[0-9A-F]{8} ?)+)", ln)
        if m: sz.append(4*len(m.group(1).split()))
    res = []; k = 0
    for l in lines:
        if l.endswith(":") or l.startswith("."): res.append(None)
        else: res.append(sz[k]); k += 1
    assert k == len(sz), (k, len(sz))
    return res
WIDEN = ("v_exp_f32", "v_add_f32", "v_sub_f32", "v_mul_f32", "v_max_f32", "v_min_f32", "v_mov_b32", "v_add_u32", "v_sub_u32", "v_xor_b32", "v_and_b32",
         "v_lshlrev_b32", "v_lshrrev_b32", "v_rcp_f32", "v_min_u32", "v_mul_u32_u24", "v_sqrt_f32", "v_fmac_f32")
def can_widen(l, sz):
    if sz != 4: return False
    op = l.split()[0]
    return op in WIDEN
def indep(a, b):
    pa, pb = parse(a), parse(b)
    if pa is None or pb is None: return False
    for p in (pa, pb):
        if p["opc"].startswith(("s_waitcnt", "s_barrier", "s_cbranch", "s_branch", "s_nop", "s_endpgm", "s_sleep", "s_cmp", "s_cselect", "s_bitcmp", "v_cmp", "s_mem", "s_load", "s_getpc")): return False
    if pa["kind"] == "salu" and pb["kind"] == "salu": return False
    if pa["w"] & (pb["r"] | pb["w"]) or pb["w"] & pa["r"]: return False
    ex = {("s", 126), ("s", 127)}
    if (pa["w"] | pb["w"]) & ex: return False
    return True
def align(lines, verbose=True, nop_run=None):
    L = list(lines); Z = sizes_of(L)
    off = 0; i = 0; mis = 0; fixed = 0; last = None
    while i < len(L):
        l, z = L[i], Z[i]
        if z is None:
            if l.startswith(".p2align"):
                a = 1 << int(l.split()[1]); off = (off + a - 1)//a*a
            last = None if l.endswith(":") and False else last
            i += 1; continue
        if z >= 8 and off % 8 == 4:
            if last is not None and can_widen(L[last], Z[last]):
                op, rest = L[last].split(None, 1); L[last] = op + "_e64 " + rest; Z[last] = 8; off += 4; fixed += 1
            else:
                done = False
                for j in range(i + 1, min(i + 4, len(L))):
                    if Z[j] is None: break
                    if Z[j] == 4 and all(indep(L[k], L[j]) for k in range(i, j)) and not any(L[k].startswith("v_mfma") for k in range(i + 1, j)):
                        L.insert(i, L.pop(j)); Z.insert(i, Z.pop(j)); done = True; fixed += 1; break
                if done: continue
                if nop_run is not None:
                    run = 0
                    for j in range(i, len(L)):
                        if Z[j] is None: continue
                        if Z[j] == 4: break
                        run += 1
                    if run >= nop_run:
                        L.insert(i, "s_nop 0"); Z.insert(i, 4); fixed += 1; continue
                mis += 1
        off += Z[i]; last = i; i += 1
    if verbose: print("align: fixed", fixed, "still misaligned", mis)
    return L
```

```python
from asmlib import *
import struct, math
def f32(x): return hex(struct.unpack("<I", struct.pack("<f", x))[0])
XN_OFF = 0; KV_OFF = 0x200000; SLAB_OFF = 0x2200000; HST_OFF = 0x4000000; FLG_OFF = 0x5000000; STAMP_OFF = 0x8000000
WS_BYTES = 268435456
OOB = "0x40000000"
MF = "v_mfma_f32_16x16x32_bf16"
def srd(A, d, p, nbytes):
    A(f"s_mov_b32 s{d}, s{p}"); A(f"s_and_b32 s{d+1}, s{p+1}, 0xffff"); A(f"s_mov_b32 s{d+2}, {nbytes}"); A(f"s_mov_b32 s{d+3}, 0x00020000")
def kd(name, vgpr, accum, sgpr=102):
    return f""".section .rodata,"a"
.p2align 6
.amdhsa_kernel {name}
  .amdhsa_next_free_vgpr {vgpr}
  .amdhsa_next_free_sgpr {sgpr}
  .amdhsa_accum_offset {accum}
  .amdhsa_group_segment_fixed_size 0
  .amdhsa_kernarg_size 112
  .amdhsa_user_sgpr_count 2
  .amdhsa_user_sgpr_kernarg_segment_ptr 1
  .amdhsa_system_sgpr_workgroup_id_x 1
.end_amdhsa_kernel
"""
S_WS=4; S_A=8; S_Bw=12; S_C=16; S_Dd=20
S_WAVE=24; S_RR=25; S_ROLE=26; S_H=27; S_I=28; S_QB=29; S_QBL=30; S_KVO=31; S_W4=32; S_W2K=33
S_PA=34; S_PB=35; S_DEL=36; S_REND=37; S_KP=38; S_VP=39; S_T0=40; S_T1=41; S_T2=42; S_CNT=43
S_JK=44; S_JV=45; S_JTK=46; S_JTV=47; S_D=48; S_PQ=49; S_P1=50; S_PX=51
G_PURE=48; G_ISV=52; G_AS=53; G_WSO=54; G_AW=55; G_WP=56; G_CUR=57; G_DLT=58; G_TGT=59
G_ST=60; G_X1=96; G_HF=97; S_X0=98; S_X1=99; G_X2=36; G_OA=53
PT=84
V_LANE=1; V_L16=27; V_L16B=26; V_T3=28; V_T4=29; V_T0=30; V_T1=31
V_DO=2; V_DO5=124; V_RB=16; V_RX=8; V_RK=9; V_HT=10; V_T2=24
XB=240
V_RD=25; V_MX=18; V_NM0=20; V_THR=22; V_L16R=23; V_F0=28
V_LS=2; V_LL=10; ONES=120
F=32; S=64; E=80; NM=96; P=112
OL=128; QS=0; QL=64; OS=128
NEG = f32(-1e30); THR = f32(8.0)
RING = 163840
NAMES = []

def gacc(t): return vr(32 + 4*t, 4) if t < 56 else ar(64 + 4*(t - 56), 4)
def dpp_sum2(A, va, vb, sa, sb):
    for m in ("row_shr:1", "row_shr:2", "row_shr:4", "row_shr:8"):
        A(f"v_add_f32_dpp v{va}, v{va}, v{va} {m} row_mask:0xf bank_mask:0xf bound_ctrl:0")
        A(f"v_add_f32_dpp v{vb}, v{vb}, v{vb} {m} row_mask:0xf bank_mask:0xf bound_ctrl:0")
        A("s_nop 0")
    for m, rm in (("row_bcast:15", "0xa"), ("row_bcast:31", "0xc")):
        A(f"v_add_f32_dpp v{va}, v{va}, v{va} {m} row_mask:{rm} bank_mask:0xf")
        A(f"v_add_f32_dpp v{vb}, v{vb}, v{vb} {m} row_mask:{rm} bank_mask:0xf")
        A("s_nop 0")
    A(f"v_readlane_b32 s{sa}, v{va}, 63"); A(f"v_readlane_b32 s{sb}, v{vb}, 63"); A("s_nop 1")
def groupop(A, vs, ts, op):
    for sw in ("v_permlane16_swap_b32", "v_permlane32_swap_b32"):
        for v, t in zip(vs, ts): A(f"v_mov_b32 v{t}, v{v}")
        A("s_nop 1")
        for v, t in zip(vs, ts): A(f"{sw} v{v}, v{t}")
        A("s_nop 1")
        for v, t in zip(vs, ts): A(f"{op} v{v}, v{v}, v{t}")
def max_tree():
    L = []
    for v in range(2): L.append(f"v_max3_f32 v{V_MX+v}, v{S+8*v}, v{S+8*v+1}, v{S+8*v+2}")
    for v in range(2): L.append(f"v_max3_f32 v{V_MX+v}, v{V_MX+v}, v{S+8*v+3}, v{S+8*v+4}")
    for v in range(2): L.append(f"v_max3_f32 v{V_MX+v}, v{V_MX+v}, v{S+8*v+5}, v{S+8*v+6}")
    for v in range(2): L.append(f"v_max_f32 v{V_MX+v}, v{V_MX+v}, v{S+8*v+7}")
    return L

def gen(name="fused_kernel", st_on=False, abl=""):
    A = Asm(); N = name
    def flat(L):
        for g in L:
            for i in (g if isinstance(g, (list, tuple)) else [g]): A(i)
    def fl(L):
        o = []
        for g in L: o += (list(g) if isinstance(g, (list, tuple)) else [g])
        return o
    sidx = [0]
    def stmp(nm, wait=True):
        if st_on:
            assert sidx[0] < 10
            A(f"s_memrealtime s[{64+2*sidx[0]}:{65+2*sidx[0]}]")
            if wait: A("s_waitcnt lgkmcnt(0)")
        NAMES.append(nm); sidx[0] += 1
    def spin(lab, load, vdst, target, first):
        A("s_mov_b32 s3, 0")
        A(f"s_waitcnt vmcnt({first})")
        A.label(lab)
        A(f"v_readfirstlane_b32 s{S_X0}, v{vdst}")
        A("s_add_u32 s3, s3, 1")
        A(f"s_cmp_ge_u32 s{S_X0}, {target}")
        A(f"s_cbranch_scc1 {lab}_ok")
        A("s_cmp_ge_u32 s3, 0x400000")
        A(f"s_cbranch_scc1 {lab}_ok")
        A("s_sleep 1")
        A(load)
        A("s_waitcnt vmcnt(0)")
        A(f"s_branch {lab}")
        A.label(f"{lab}_ok")
    A(f".p2align 8\n.type {name},@function")
    A.label(name)
    A("s_cmp_ge_u32 s2, 256")
    A(f"s_cbranch_scc1 L_{N}_end")
    stmp("start", False)
    A("s_getpc_b64 s[98:99]")
    A.label(f"L_{N}_pc")
    A("s_lshr_b32 s3, s2, 3")
    A("v_lshrrev_b32 v16, 3, v0")
    A("v_lshlrev_b32 v16, 5, v16")
    A("v_add_u32 v16, s3, v16")
    A("v_lshlrev_b32 v16, 7, v16")
    A(f"v_min_u32 v16, L_{N}_end - L_{N}_pc, v16")
    A("global_load_dword v25, v16, s[98:99]")
    A(f"s_load_dwordx4 s[{PT}:{PT+3}], s[0:1], 0")
    A(f"s_load_dwordx4 s[{PT+4}:{PT+7}], s[0:1], 24")
    A(f"s_load_dwordx2 s[{PT+8}:{PT+9}], s[0:1], 104")
    A(f"s_load_dwordx2 s[{PT+10}:{PT+11}], s[0:1], 64")
    A("s_load_dwordx2 s[100:101], s[0:1], 96")
    A(f"v_and_b32 v{V_LANE}, 63, v0")
    A("v_lshrrev_b32 v26, 6, v0")
    A(f"s_and_b32 s{S_T0}, s2, 7")
    A(f"v_readfirstlane_b32 s{S_WAVE}, v26")
    A(f"s_lshl_b32 s{S_T0}, s{S_T0}, 1")
    A(f"s_lshr_b32 s{S_I}, s2, 4")
    A(f"s_bfe_u32 s{S_T1}, s2, 0x10003")
    A(f"s_add_u32 s{S_H}, s{S_T0}, s{S_T1}")
    GH, GMT, GWM, GWN = S_JK, S_JV, S_JTK, S_JTV
    A(f"s_bfe_u32 s{GMT}, s2, 0x30003")
    A(f"s_bfe_u32 s{S_T1}, s2, 0x10006")
    A(f"s_add_u32 s{GH}, s{S_T0}, s{S_T1}")
    A(f"s_lshr_b32 s{G_ISV}, s2, 7")
    A(f"s_lshr_b32 s{GWM}, s{S_WAVE}, 1")
    A(f"s_and_b32 s{GWN}, s{S_WAVE}, 1")
    A(f"s_and_b32 s{S_RR}, s{S_WAVE}, 1")
    A(f"s_lshl_b32 s{S_KVO}, s{S_WAVE}, 13")
    A(f"s_add_u32 s{G_AW}, s{S_KVO}, 65536")
    A(f"s_lshl_b32 s{S_W4}, s{S_WAVE}, 12")
    A(f"s_mov_b32 s{G_WP}, s{S_W4}")
    def wrow_voffs(dst, sh, t0, t1, t2):
        L = [f"v_lshrrev_b32 v{t0}, 5, v{V_LANE}", f"s_lshl_b32 s{S_T0}, s{S_WAVE}, 3", f"v_add_u32 v{t1}, s{S_T0}, v{t0}",
             f"v_lshlrev_b32 v{t1}, 13, v{t1}", f"s_lshl_b32 s{S_T0}, s{sh}, 9", f"v_add_u32 v{t1}, s{S_T0}, v{t1}",
             f"v_lshlrev_b32 v{t0}, 1, v{t0}", f"v_and_b32 v{t2}, 31, v{V_LANE}", f"v_xor_b32 v{t0}, v{t0}, v{t2}",
             f"s_lshl_b32 s{S_T0}, s{S_RR}, 3", f"v_xor_b32 v{t0}, s{S_T0}, v{t0}",
             f"v_xor_b32 v{t2}, 4, v{t0}", f"v_lshl_add_u32 v{t0}, v{t0}, 4, v{t1}", f"v_lshl_add_u32 v{t2}, v{t2}, 4, v{t1}"]
        for c in range(4): L.append(f"v_add_u32 v{dst+c}, {2*c*8192 - c*1024}, v{t0 if c % 2 == 0 else t2}")
        return L
    flat(wrow_voffs(10, GH, 28, 29, 30))
    A(f"s_lshl_b32 s{S_T0}, s{GMT}, 8")
    A(f"s_lshl_b32 s{S_T1}, s{S_WAVE}, 6")
    A(f"s_add_u32 s{S_T0}, s{S_T0}, s{S_T1}")
    A(f"v_lshrrev_b32 v28, 3, v{V_LANE}")
    A(f"v_add_u32 v28, s{S_T0}, v28")
    A("v_lshlrev_b32 v28, 11, v28")
    A(f"v_lshrrev_b32 v29, 4, v{V_LANE}")
    A(f"v_and_b32 v30, 7, v{V_LANE}")
    A("v_xor_b32 v29, v29, v30")
    A("v_xor_b32 v30, 4, v29")
    A("v_lshl_add_u32 v29, v29, 4, v28")
    A("v_lshl_add_u32 v30, v30, 4, v28")
    for c in range(8): A(f"v_add_u32 v{2+c}, {8*c*2048 - (c & 3)*1024}, v{29 + (c & 1)}")
    LQ, LO = S_PQ, S_P1
    A(f"s_lshl_b32 s{LQ}, s2, 3")
    A(f"s_lshl_b32 s{S_T1}, s{S_WAVE}, 1")
    A(f"s_add_u32 s{LQ}, s{LQ}, s{S_T1}")
    A(f"s_mul_i32 s{LO}, s{LQ}, 896")
    A(f"v_lshlrev_b32 v{V_L16}, 4, v{V_LANE}")
    for r in range(100, 108): A(f"v_mov_b32 v{r}, 0")
    A(f"s_mov_b32 s{S_PA}, -1")
    A(f"s_mov_b32 s{S_PB}, 0x00ffffff")
    A(f"s_mov_b32 s{G_AS}, 0")
    A(f"s_mov_b32 s{G_WSO}, 0")
    A("s_waitcnt lgkmcnt(0)")
    srd(A, S_A, PT+2, 2048*1024*2)
    A(f"s_cmp_eq_u32 s{G_ISV}, 0")
    A(f"s_cselect_b32 s{PT+4}, s{PT+4}, s{PT+6}")
    A(f"s_cselect_b32 s{PT+5}, s{PT+5}, s{PT+7}")
    srd(A, S_Bw, PT+4, 1024*4096*2)
    srd(A, S_C, PT, 2048*448*2)
    A(f"s_mov_b64 exec, s[{S_PA}:{S_PB}]")
    A(f"buffer_load_dwordx4 v[100:103], v{V_L16}, s[{S_C}:{S_C+3}], s{LO} offen")
    A(f"buffer_load_dwordx4 v[104:107], v{V_L16}, s[{S_C}:{S_C+3}], s{LO} offen offset:896")
    A("s_mov_b64 exec, -1")
    def dmaW(m0):
        L = [[m0, "s_nop 0", f"buffer_load_dwordx4 v10, s[{S_Bw}:{S_Bw+3}], s{G_WSO} offen lds"]]
        for c in range(1, 4): L.append([f"buffer_load_dwordx4 v{10+c}, s[{S_Bw}:{S_Bw+3}], s{G_WSO} offen offset:{c*1024} lds"])
        L[-1].append(f"s_add_u32 s{G_WSO}, s{G_WSO}, {32*8192}")
        return L
    def dmaA(m0, hi):
        L = []
        for c in range(4*hi, 4*hi + 4):
            g = [m0, "s_nop 0"] if c % 4 == 0 else []
            g.append(f"buffer_load_dwordx4 v{2+c}, s[{S_A}:{S_A+3}], s{G_AS} offen offset:{(c & 3)*1024} lds")
            L.append(g)
        if hi: L[-1].append(f"s_add_u32 s{G_AS}, s{G_AS}, 128")
        return L
    flat(dmaW(f"s_add_u32 m0, s{G_WP}, 0")); flat(dmaW(f"s_add_u32 m0, s{G_WP}, 16384"))
    flat(dmaA(f"s_add_u32 m0, s{G_AW}, 0", 0)); flat(dmaA(f"s_add_u32 m0, s{G_AW}, 4096", 1))
    srd(A, S_WS, PT+8, WS_BYTES)
    srd(A, S_Dd, PT+10, 1792*2)
    A(f"s_load_dwordx2 s[{PT}:{PT+1}], s[0:1], 16")
    A(f"s_load_dwordx2 s[{PT+2}:{PT+3}], s[0:1], 56")
    A(f"s_load_dwordx2 s[{PT+4}:{PT+5}], s[0:1], 40")
    A(f"s_load_dwordx2 s[{PT+6}:{PT+7}], s[0:1], 72")
    A(f"v_and_b32 v28, 15, v{V_LANE}")
    A(f"s_lshl_b32 s{S_T0}, s{GWM}, 7")
    A(f"v_add_u32 v29, s{S_T0}, v28")
    A("v_lshlrev_b32 v29, 7, v29")
    A("v_add_u32 v29, 65536, v29")
    A("v_lshrrev_b32 v28, 1, v28")
    A(f"v_lshrrev_b32 v30, 4, v{V_LANE}")
    A("v_xor_b32 v28, v28, v30")
    A("v_lshl_add_u32 v14, v28, 4, v29")
    A("v_xor_b32 v28, 4, v28")
    A("v_lshl_add_u32 v15, v28, 4, v29")
    def nat_bases(dst, add, t0, t1, t2, rk=None):
        L = [f"v_bfe_u32 v{t0}, v{V_LANE}, 2, 2", f"v_lshrrev_b32 v{t1}, 4, v{V_LANE}", f"v_lshl_add_u32 v{t1}, v{t1}, 3, v{t0}"]
        if rk is not None: L.append(f"v_lshlrev_b32 v{rk}, 8, v{t1}")
        L += [f"v_lshlrev_b32 v{t1}, 9, v{t1}", f"v_and_b32 v{t2}, 3, v{V_LANE}", f"v_lshl_add_u32 v{t1}, v{t2}, 3, v{t1}",
              f"v_add_u32 v{t1}, {add}, v{t1}", f"v_bfe_u32 v{t0}, v{V_LANE}, 2, 3"]
        for p in range(8):
            L.append(f"v_xor_b32 v{t2}, {p}, v{t0}")
            L.append(f"v_lshl_add_u32 v{dst+p}, v{t2}, 5, v{t1}")
        return L
    A(f"s_lshl_b32 s{S_T1}, s{GWN}, 8")
    flat(nat_bases(16, f"s{S_T1}", 28, 29, 31))
    A(f"s_lshl_b32 s{S_T0}, s{GH}, 6")
    A(f"s_lshl_b32 s{S_T1}, s{GMT}, 3")
    A(f"s_add_u32 s{S_T0}, s{S_T0}, s{S_T1}")
    A(f"s_lshl_b32 s{S_T1}, s{GWM}, 2")
    A(f"s_add_u32 s{S_T0}, s{S_T0}, s{S_T1}")
    A(f"s_lshl_b32 s{S_T0}, s{S_T0}, 15")
    A(f"s_lshl_b32 s{S_T1}, s{G_ISV}, 14")
    A(f"s_add_u32 s{S_T0}, s{S_T0}, s{S_T1}")
    A(f"s_add_u32 s{S_T0}, s{S_T0}, {KV_OFF}")
    A(f"s_add_u32 s{S_T1}, s{G_ISV}, 12")
    A(f"s_lshl_b32 s{S_T1}, s{GWN}, s{S_T1}")
    A(f"s_add_u32 s{G_ST}, s{S_T0}, s{S_T1}")
    A(f"s_cmp_eq_u32 s{G_ISV}, 0")
    A(f"s_cselect_b32 s{S_T1}, 1, 32")
    A(f"s_cselect_b32 s{G_X1}, 8, 1")
    A(f"s_cselect_b32 s{G_X2}, 24, 1")
    A(f"s_lshl_b32 s{S_T1}, s{S_T1}, 10")
    A(f"s_lshl_b32 s{G_X1}, s{G_X1}, 10")
    A(f"s_lshl_b32 s{G_X2}, s{G_X2}, 10")
    for k in range(1, 4): A(f"s_add_u32 s{G_ST+k}, s{G_ST+k-1}, s{S_T1}")
    A(f"s_lshl_b32 s{G_HF}, s{GH}, 7")
    A(f"s_add_u32 s{G_HF}, s{G_HF}, {FLG_OFF}")
    A(f"s_lshr_b32 s{S_ROLE}, s{S_WAVE}, 1")
    A(f"s_lshl_b32 s{S_T0}, s{S_I}, 1")
    A(f"s_sub_u32 s{S_QBL}, 62, s{S_T0}")
    A(f"s_add_u32 s{S_QBL}, s{S_QBL}, s{S_RR}")
    A(f"s_add_u32 s{S_T1}, s{S_T0}, s{S_RR}")
    A(f"s_cmp_eq_u32 s{S_ROLE}, 0")
    A(f"s_cselect_b32 s{S_QB}, s{S_QBL}, s{S_T1}")
    A(f"s_lshl_b32 s{S_W2K}, s{S_WAVE}, 11")
    A(f"s_add_u32 s{S_W2K}, s{S_W2K}, 16384")
    A(f"s_lshl_b32 s{S_T0}, s{S_H}, 21")
    A(f"s_add_u32 s{S_T0}, s{S_T0}, {KV_OFF}")
    A(f"s_lshl_b32 s{S_T1}, s{S_RR}, 13")
    A(f"s_add_u32 s{S_KP}, s{S_T0}, s{S_T1}")
    A(f"s_add_u32 s{S_VP}, s{S_KP}, 16384")
    A(f"s_lshl_b32 s{S_T1}, s{S_I}, 16")
    A(f"s_add_u32 s{S_T1}, s{S_T1}, 65536")
    A(f"s_cmp_eq_u32 s{S_ROLE}, 0")
    A(f"s_cselect_b32 s{S_T1}, 1, s{S_T1}")
    A(f"s_add_u32 s{S_JK}, s{S_KP}, s{S_T1}")
    A(f"s_add_u32 s{S_JV}, s{S_VP}, s{S_T1}")
    A(f"s_add_u32 s{S_JTK}, s{S_KP}, {33*32768}")
    A(f"s_add_u32 s{S_JTV}, s{S_VP}, {33*32768}")
    A(f"s_mov_b32 s{S_REND}, {RING}")
    A(f"s_mul_i32 s{S_PX}, s{S_QB}, {28*1024}")
    A("s_waitcnt vmcnt(16)")
    X = (110, 120); SU = (130, 131); MU = (132, 133); VA = (134, 135); T = (136, 137)
    for row in range(2):
        for e in range(4):
            A(f"v_lshlrev_b32 v{X[row]+2*e}, 16, v{100+4*row+e}")
            A(f"v_and_b32 v{X[row]+2*e+1}, 0xffff0000, v{100+4*row+e}")
        A(f"v_add_f32 v{SU[row]}, v{X[row]}, v{X[row]+1}")
        for e in range(2, 8): A(f"v_add_f32 v{SU[row]}, v{SU[row]}, v{X[row]+e}")
    A("s_nop 1")
    dpp_sum2(A, SU[0], SU[1], S_T0, S_T1)
    for row in range(2):
        A(f"v_mov_b32 v{MU[row]}, s{S_T0+row}")
        A(f"v_mul_f32 v{MU[row]}, 0x3b124925, v{MU[row]}")
        A(f"v_mov_b32 v{SU[row]}, 0")
    A(f"s_mov_b64 exec, s[{S_PA}:{S_PB}]")
    for e in range(8):
        for row in range(2):
            A(f"v_sub_f32 v{T[row]}, v{X[row]+e}, v{MU[row]}")
            A(f"v_fmac_f32 v{SU[row]}, v{T[row]}, v{T[row]}")
    A("s_mov_b64 exec, -1")
    A("s_nop 1")
    dpp_sum2(A, SU[0], SU[1], S_T0, S_T1)
    seq = ["v_mov_b32 v{VA}, s{S}", "v_mul_f32 v{VA}, 0x3b124925, v{VA}",
        "v_cvt_pk_bf16_f32 v{T}, v{MU}, v{VA}", "v_lshlrev_b32 v{MU}, 16, v{T}", "v_and_b32 v{VA}, 0xffff0000, v{T}",
        "v_add_f32 v{VA}, 0x3727c5ac, v{VA}", "v_cvt_pk_bf16_f32 v{T}, v{VA}, v{VA}", "v_lshlrev_b32 v{VA}, 16, v{T}",
        "v_sqrt_f32 v{VA}, v{VA}", "v_cvt_pk_bf16_f32 v{T}, v{VA}, v{VA}", "v_lshlrev_b32 v{VA}, 16, v{T}", "v_rcp_f32 v{VA}, v{VA}"]
    for s in seq:
        for row in range(2): A(s.format(VA=VA[row], MU=MU[row], T=T[row], S=S_T0+row))
    for row in range(2):
        x = X[row]
        for e in range(8): A(f"v_sub_f32 v{x+e}, v{x+e}, v{MU[row]}")
        for e in range(4):
            A(f"v_cvt_pk_bf16_f32 v{T[row]}, v{x+2*e}, v{x+2*e+1}")
            A(f"v_lshlrev_b32 v{x+2*e}, 16, v{T[row]}")
            A(f"v_and_b32 v{x+2*e+1}, 0xffff0000, v{T[row]}")
        for e in range(8): A(f"v_mul_f32 v{x+e}, v{x+e}, v{VA[row]}")
        for e in range(4): A(f"v_cvt_pk_bf16_f32 v{100+4*row+e}, v{x+2*e}, v{x+2*e+1}")
    flat(dmaW(f"s_add_u32 m0, s{G_WP}, 32768")); flat(dmaW(f"s_add_u32 m0, s{G_WP}, 49152"))
    flat(dmaA(f"s_add_u32 m0, s{G_AW}, 32768", 0)); flat(dmaA(f"s_add_u32 m0, s{G_AW}, 32768+4096", 1))
    A(f"s_lshl_b32 s{S_T0}, s2, 7")
    A(f"s_add_u32 s{S_T0}, s{S_T0}, {FLG_OFF}")
    A(f"s_lshl_b32 s{S_T1}, s{S_WAVE}, 5")
    A(f"s_add_u32 s{S_T1}, s{S_T1}, s2")
    A(f"s_cmp_lt_u32 s{S_T1}, 32")
    A(f"s_cselect_b32 s{S_T0}, s{S_T0}, {OOB}")
    for r in range(96, 100): A(f"v_mov_b32 v{r}, 0")
    A("s_mov_b64 exec, 0xff")
    A(f"buffer_store_dwordx4 v[96:99], v{V_L16}, s[{S_WS}:{S_WS+3}], s{S_T0} offen sc1")
    A("s_mov_b64 exec, -1")
    A(f"s_lshr_b32 s{S_T0}, s{LQ}, 5")
    A(f"s_mul_i32 s{S_T0}, s{S_T0}, {28*1024}")
    A(f"s_bfe_u32 s{S_T1}, s{LQ}, 0x10004")
    A(f"s_lshl_b32 s{S_T1}, s{S_T1}, 10")
    A(f"s_add_u32 s{S_T0}, s{S_T0}, s{S_T1}")
    A(f"s_and_b32 s{S_T1}, s{LQ}, 15")
    A(f"s_lshl_b32 s{S_T1}, s{S_T1}, 4")
    A(f"s_add_u32 s{S_T0}, s{S_T0}, s{S_T1}")
    A(f"v_lshrrev_b32 v28, 2, v{V_LANE}")
    A("v_lshlrev_b32 v28, 11, v28")
    A(f"v_and_b32 v29, 3, v{V_LANE}")
    A("v_lshl_add_u32 v28, v29, 8, v28")
    A(f"s_mov_b64 exec, s[{S_PA}:{S_PB}]")
    A(f"buffer_store_dwordx4 v[100:103], v28, s[{S_WS}:{S_WS+3}], s{S_T0} offen sc1")
    A(f"buffer_store_dwordx4 v[104:107], v28, s[{S_WS}:{S_WS+3}], s{S_T0} offen offset:16 sc1")
    A("s_mov_b64 exec, -1")
    A("s_waitcnt lgkmcnt(0)")
    srd(A, S_C, PT, 448*4096*2)
    A(f"s_mov_b32 s{S_PQ}, 0")
    A(f"s_lshl_b32 s{S_P1}, s{S_H}, 8")
    A(f"s_cmp_ge_u32 s{S_H}, 14")
    A(f"s_cselect_b32 s{S_P1}, {OOB}, s{S_P1}")
    A(f"s_mov_b32 s{S_CNT}, 0")
    A(f"s_mov_b32 s{G_CUR}, 0")
    A(f"s_mov_b32 s{G_DLT}, 32768")
    A(f"s_add_u32 s{G_TGT}, s{G_AW}, 65536")
    A(f"s_mov_b32 s{S_PA}, 0xffff0000")
    A(f"s_mov_b32 s{S_PB}, 32768")
    A(f"s_bfe_u32 s{S_T0}, s2, 0x20003")
    A(f"s_lshl_b32 s{S_X1}, 8, s{S_T0}")
    A(f"s_or_b32 s{S_X1}, s{S_X1}, {(1<<2)|(1<<9)|(1<<11)|(1<<13)|(1<<14)}")
    A("s_waitcnt vmcnt(19)")
    A("s_barrier")
    stmp("Gpro")
    def WF(wb, ks): return (wb*2 + ks)*4
    def CF(par, ks): return 160 + par*8 + ks*4
    def g_wrd(wb):
        L = []
        for ks in range(2):
            for t in range(2):
                L.append(f"ds_read_b64_tr_b16 {ar(WF(wb,ks)+2*t,2)}, v{16+wb} offset:{(32*ks+4*t)*512} ;@w{wb}")
        return L
    def g_crd(cb): return [f"ds_read_b128 {ar(CF(cb&1,ks),4)}, v{14+ks} offset:{cb*2048} ;@c{cb}" for ks in range(2)]
    def p1_dma(slot):
        L = [[f"s_add_u32 m0, s{S_W4}, {slot}", "s_nop 0", f"buffer_load_dwordx4 v{V_DO}, s[{S_C}:{S_C+3}], s{S_PQ} offen lds"]]
        for j in range(1, 4): L.append([f"buffer_load_dwordx4 v{V_DO+j}, s[{S_C}:{S_C+3}], s{S_PQ} offen offset:{j*1024} lds"])
        L.append([f"s_add_u32 m0, s{S_W2K}, {slot}", f"s_add_u32 s{S_PQ}, s{S_PQ}, {32*8192}", f"buffer_load_dwordx4 v{V_DO+4}, s[{S_Dd}:{S_Dd+3}], s{S_P1} offen lds"])
        L.append([f"buffer_load_dwordx4 v{V_DO+5}, s[{S_Dd}:{S_Dd+3}], s{S_P1} offen offset:1024 lds"])
        L.append(["s_add_u32 m0, m0, 8192", f"s_add_u32 s{S_P1}, s{S_P1}, {32*3584}", f"buffer_load_dwordx4 v{V_L16}, s[{S_WS}:{S_WS+3}], s{S_PX} offen sc1 lds"])
        L.append([f"buffer_load_dwordx4 v{V_L16}, s[{S_WS}:{S_WS+3}], s{S_PX} offen offset:1024 sc1 lds", f"s_add_u32 s{S_PX}, s{S_PX}, 2048"])
        return L
    def pslot(c): return ((c + 3) % 5)*32768
    p1_setup = wrow_voffs(V_DO, S_H, 28, 29, 30) + [
        f"v_lshrrev_b32 v28, 4, v{V_LANE}", f"s_lshl_b32 s{S_T0}, s{S_WAVE}, 3", f"v_add_u32 v29, s{S_T0}, v28", "v_mul_u32_u24 v29, 3584, v29",
        "v_lshlrev_b32 v28, 1, v28", f"v_and_b32 v30, 15, v{V_LANE}", "v_xor_b32 v28, v28, v30",
        f"s_lshl_b32 s{S_T0}, s{S_RR}, 3", f"v_xor_b32 v28, s{S_T0}, v28",
        f"v_lshl_add_u32 v{V_DO+4}, v28, 4, v29", f"v_add_u32 v{V_DO+5}, {4*3584 - 1024}, v{V_DO+4}"]
    p1_setup2 = nat_bases(V_RB, pslot(0), 28, 29, 30, V_RK) + [
        f"s_add_u32 s{S_T0}, s{S_W2K}, {8192 + pslot(0)}", f"v_add_u32 v{V_RX}, s{S_T0}, v{V_L16}", f"s_mov_b32 s{G_OA}, 0"]
    pf = [f"s_mul_i32 s{S_T2}, s{S_I}, 28", f"s_mul_i32 s{S_T1}, s{S_WAVE}, 7", f"s_add_u32 s{S_T2}, s{S_T2}, s{S_T1}",
          f"v_min_u32 v10, 27, v{V_LANE}", "v_lshrrev_b32 v11, 2, v10", f"v_add_u32 v11, s{S_T2}, v11", "v_and_b32 v13, 3, v10",
          "v_lshlrev_b32 v12, 13, v11", "v_lshl_add_u32 v12, v13, 7, v12", f"s_lshl_b32 s{S_T1}, s{S_H}, 9",
          f"buffer_load_dword v26, v12, s[{S_C}:{S_C+3}], s{S_T1} offen",
          "v_mul_u32_u24 v12, 3584, v11", "v_and_b32 v13, 1, v13", "v_lshl_add_u32 v12, v13, 7, v12",
          f"buffer_load_dword v26, v12, s[{S_Dd}:{S_Dd+3}], s{S_P1} offen",
          f"s_lshl_b32 s{S_T1}, s{S_H}, 4", f"s_add_u32 s{S_T1}, s{S_T1}, s{S_I}", f"s_lshl_b32 s{S_T1}, s{S_T1}, 2", f"s_add_u32 s{S_T1}, s{S_T1}, s{S_WAVE}",
          f"s_mul_i32 s{S_T1}, s{S_T1}, 3584", "v_lshlrev_b32 v10, 7, v10", f"v_add_u32 v10, s{S_T1}, v10",
          f"global_load_dword v26, v10, s[{PT+4}:{PT+5}]", "v_lshrrev_b32 v10, 1, v10", f"v_min_u32 v10, {1792*896 - 64}, v10",
          f"global_load_dword v26, v10, s[{PT+6}:{PT+7}]"]
    bias_unpack = []
    for g in range(16):
        o = 4*(g >> 1) + 2*(g & 1)
        bias_unpack += [f"v_accvgpr_read_b32 v31, a{224+g}", "v_lshlrev_b32 v24, 16, v31", "v_and_b32 v31, 0xffff0000, v31",
                        f"v_accvgpr_write_b32 a{96+o}, v24", f"v_accvgpr_write_b32 a{96+o+1}, v31",
                        f"v_accvgpr_write_b32 a{128+o}, v24", f"v_accvgpr_write_b32 a{128+o+1}, v31"]
    def gchunk(isV, mode):
        lp = mode in ("loop", "first")
        M = []
        for cb in range(8):
            for wb in range(8):
                t = wb*8 + cb if isV else cb*8 + wb
                for n_, ks in enumerate((0, 1) if wb % 2 == 0 else (1, 0)):
                    c = ar(CF(cb & 1, ks), 4); w = ar(WF(wb, ks), 4)
                    a, b = (c, w) if isV else (w, c)
                    M.append(f"{MF} {gacc(t)}, {a}, {b}, {'0' if (mode == 'first' and n_ == 0) else gacc(t)}")
        W = Weave(M)
        for cb in range(8):
            g0 = 16*cb
            W.pre[g0].append(f"WAITLDS c{cb}")
            if cb == 0:
                for wb in range(0, 8, 2): W.pre[2*wb].append(f"WAITLDS w{wb+1}")
            if cb == 1 and mode != "t15": W.pre[g0].append("s_barrier")
            if cb == 7 and mode != "t15":
                W.pre[g0] += ["s_waitcnt vmcnt(16)" if lp else "s_waitcnt vmcnt(12)", "s_barrier"]
                W.post[g0] += g_crd(0)
                for wb in range(8):
                    r = g_wrd(wb)
                    W.post[g0 + 2*wb + 1] += r[:2]
                    W.post[min(g0 + 2*wb + 2, 127)] += r[2:]
            if cb < 7: W.at(g_crd(cb + 1), [g0 + (8 if cb == 0 else 1), g0 + (10 if cb == 0 else 3)])
        if mode != "t15":
            W.spread([f"v_xor_b32 v{16+j}, 0x8000, v{16+j}" for j in range(8)], 70, 95)
            W.post[101].append(f"v_add_u32 v14, s{G_DLT}, v14")
            W.post[103].append(f"v_add_u32 v15, s{G_DLT}, v15")
            W.post[106] += [f"s_add_u32 s{G_TGT}, s{G_AW}, s{G_CUR}", f"s_add_u32 s{G_CUR}, s{G_CUR}, s{G_DLT}"]
            W.post[108] += [f"s_cmp_eq_u32 s{G_CUR}, 65536", f"s_cselect_b32 s{G_DLT}, s{S_PA}, s{S_PB}"]
        if lp:
            dl = dmaA(f"s_mov_b32 m0, s{G_TGT}", 0) + dmaW(f"s_mov_b32 m0, s{G_WP}") + dmaA(f"s_add_u32 m0, s{G_TGT}, 4096", 1) + dmaW(f"s_add_u32 m0, s{G_WP}, 16384")
            W.spread(dl, 5, 105)
            W.post[110] += [f"s_xor_b32 s{G_WP}, s{G_WP}, 0x8000", f"s_add_u32 s{S_CNT}, s{S_CNT}, 1"]
            W.post[127] += [f"s_bitcmp0_b32 s{S_X1}, s{S_CNT}"]
        if mode == "t14":
            W.spread(pf, 2, 30); W.spread(p1_setup, 12, 44)
            W.spread(p1_dma(pslot(0)), 48, 104)
            W.spread(bias_unpack[:56], 46, 110)
            W.post[111] += [f"v_readfirstlane_b32 s{G_PURE}, v25"]
        if mode == "t15":
            W.spread(p1_dma(pslot(1)) + p1_dma(pslot(2)), 4, 116)
            W.post[1] += [f"s_bfe_u32 s{S_T1}, s{G_PURE}, 0xa0006", f"s_mul_i32 s{S_T1}, s{S_T1}, s{S_T1}"]
            W.post[2] += [f"s_lshr_b32 s{G_PURE}, s{G_PURE}, 16", f"s_lshl_b32 s{G_PURE}, s{G_PURE}, 5"]
            W.post[3] += [f"s_sub_u32 s{G_PURE}, s{G_PURE}, s{S_T1}"]
            W.spread(bias_unpack[56:], 4, 64)
            W.spread(p1_setup2, 66, 120)
        return W.lines()
    pre = g_crd(0)
    for wb in range(8): pre += g_wrd(wb)
    pre, qg = resolve_lds(pre, [])
    flat(pre)
    A(f"s_cmp_eq_u32 s{G_ISV}, 0")
    A(f"s_cbranch_scc0 L_{N}_gV")
    for isV in (0, 1):
        tag = "V" if isV else "K"
        if isV: A.label(f"L_{N}_gV")
        l, q = resolve_lds(gchunk(isV, "first"), qg); assert q == qg, (q, qg)
        flat(l)
        A(".p2align 3")
        A.label(f"L_{N}_loop{tag}")
        l, q = resolve_lds(gchunk(isV, "loop"), qg); assert q == qg
        flat(l)
        A(f"s_cbranch_scc1 L_{N}_loop{tag}")
        A(f"s_cmp_lg_u32 s{S_CNT}, 14")
        A(f"s_cbranch_scc1 L_{N}_hook")
        for mode in ("t14", "t15"):
            l, q = resolve_lds(gchunk(isV, mode), qg); flat(l)
        A(f"s_branch L_{N}_gdone")
    A.label(f"L_{N}_hook")
    A(f"s_cmp_eq_u32 s{S_CNT}, 13")
    A(f"s_cbranch_scc1 L_{N}_hpf")
    A(f"s_cmp_lg_u32 s{S_CNT}, 2")
    A(f"s_cbranch_scc1 L_{N}_h1")
    A(f"v_lshrrev_b32 v28, 4, v{V_LANE}")
    A("v_lshlrev_b32 v28, 3, v28")
    A(f"s_lshl_b32 s{S_T0}, s{S_H}, 8")
    for g in range(8): A(f"buffer_load_dwordx2 a[{224+2*g}:{224+2*g+1}], v28, s[{S_Dd}:{S_Dd+3}], s{S_T0} offen offset:{g*32}")
    A(f"s_branch L_{N}_hret")
    A.label(f"L_{N}_h1")
    A(f"s_cmp_lg_u32 s{S_WAVE}, 0")
    A(f"s_cbranch_scc1 L_{N}_hret")
    A(f"s_cmp_ge_u32 s{S_CNT}, 9")
    A(f"s_cbranch_scc1 L_{N}_h2")
    A(f"s_getreg_b32 s{S_T0}, hwreg(HW_REG_XCC_ID, 0, 4)")
    A(f"s_mul_i32 s{S_T1}, s{S_T0}, s{S_T0}")
    A(f"s_lshl_b32 s{S_T1}, s{S_T1}, 16")
    A(f"s_lshl_b32 s{S_T0}, s{S_T0}, 6")
    A(f"s_add_u32 s{S_T0}, s{S_T0}, s{S_T1}")
    A(f"s_add_u32 s{S_T0}, s{S_T0}, 1")
    A(f"s_and_b32 s{S_T1}, s2, 7")
    A(f"s_lshl_b32 s{S_T1}, s{S_T1}, 5")
    A(f"v_mov_b32 v28, s{S_T1}")
    A(f"v_mov_b32 v29, s{S_T0}")
    A("s_mov_b64 exec, 1")
    A("global_atomic_add v28, v29, s[100:101]")
    A("s_mov_b64 exec, -1")
    A(f"s_branch L_{N}_hret")
    A.label(f"L_{N}_h2")
    A(f"v_and_b32 v28, 7, v{V_LANE}")
    A("v_lshlrev_b32 v28, 5, v28")
    A(f"s_cmp_eq_u32 s{S_CNT}, 9")
    A(f"s_cbranch_scc0 L_{N}_h3")
    A("global_load_dword v24, v28, s[100:101] sc1")
    A(f"s_branch L_{N}_hret")
    A.label(f"L_{N}_h3")
    A("s_mov_b32 s3, 0")
    A("s_waitcnt vmcnt(32)")
    A.label(f"L_{N}_pl1")
    A("v_and_b32 v24, 63, v24")
    A("v_cmp_ne_u32 vcc, 32, v24")
    A("s_add_u32 s3, s3, 1")
    A(f"s_cbranch_vccz L_{N}_hret")
    A("s_cmp_ge_u32 s3, 0x400000")
    A(f"s_cbranch_scc1 L_{N}_hret")
    A("s_sleep 1")
    A("global_load_dword v24, v28, s[100:101] sc1")
    A("s_waitcnt vmcnt(0)")
    A(f"s_branch L_{N}_pl1")
    A.label(f"L_{N}_hpf")
    srd(A, S_Dd, PT+2, 448*1792*2)
    A(f"s_and_b32 s{S_T1}, s2, 7")
    A(f"s_lshl_b32 s{S_T1}, s{S_T1}, 5")
    A(f"v_mov_b32 v28, s{S_T1}")
    A("global_load_dword v25, v28, s[100:101] sc1")
    A.label(f"L_{N}_hret")
    A(f"s_cmp_eq_u32 s{G_ISV}, 0")
    A(f"s_cbranch_scc1 L_{N}_loopK")
    A(f"s_branch L_{N}_loopV")
    A.label(f"L_{N}_gdone")
    stmp("Gloop")
    D = 5; FA = 224
    def kv_dma(isV, slot):
        p, j, jt = (S_VP, S_JV, S_JTV) if isV else (S_KP, S_JK, S_JTK)
        L = [[f"s_add_u32 m0, s{S_KVO}, {slot}", "s_nop 0", f"buffer_load_dwordx4 v{V_L16}, s[{S_WS}:{S_WS+3}], s{p} offen sc1 lds"]]
        for k in range(1, 4): L.append([f"buffer_load_dwordx4 v{V_L16}, s[{S_WS}:{S_WS+3}], s{p} offen offset:{k*1024} sc1 lds"])
        L[3].append("s_add_u32 m0, m0, 4096")
        L.append([f"buffer_load_dwordx4 v{V_L16B}, s[{S_WS}:{S_WS+3}], s{p} offen sc1 lds"])
        for k in range(1, 4): L.append([f"buffer_load_dwordx4 v{V_L16B}, s[{S_WS}:{S_WS+3}], s{p} offen offset:{k*1024} sc1 lds"])
        L[7] += [f"s_add_u32 s{p}, s{p}, 32768", f"s_cmp_eq_u32 s{p}, s{j}", f"s_cselect_b32 s{p}, s{jt}, s{p}"]
        return L
    def pacc(nb, v):
        if nb < 16: return ar((0 if v == 0 else 160) + 4*nb, 4)
        return ar(96 + 32*v + 4*(nb - 16), 4)
    def xb(c, v): return ar(248 + 4*v, 4) if c % 2 == 0 else vr(32 + 4*v, 4)
    def p1_rd(j):
        f = FA + 4*(j % 6)
        if j < 16:
            b, o, st, pre_ = V_RB + (j & 7), (j >> 3)*256, 2048, []
        else:
            b, o, st = V_HT + (j & 1), 16384, 1024
            pre_ = [f"v_sub_u32 v{b}, v{V_RB + j - 16}, v{V_RK}"]
        return pre_ + [f"ds_read_b64_tr_b16 {ar(f,2)}, v{b} offset:{o} ;@f{j}"], [f"ds_read_b64_tr_b16 {ar(f+2,2)}, v{b} offset:{o+st} ;@f{j}"]
    def p1_xrd(c): return [f"ds_read_b128 {xb(c,v)}, v{V_RX} offset:{v*1024} ;@x" for v in range(2)]
    def pair_out(p):
        a_, b_ = p >> 2, p & 3
        L = []
        if p < 28: T = 32 + 8*p
        else:
            T = 48 + 8*(p - 28)
            L += [f"v_accvgpr_read_b32 v{T+e}, a{64+8*(p-28)+e}" for e in range(8)]
        L += [f"v_cvt_pk_bf16_f32 v{T+e}, v{T+2*e}, v{T+2*e+1}" for e in range(4)]
        g = [f"s_add_u32 s{S_T1}, s{G_ST+b_}, s{G_OA}", f"buffer_store_dwordx4 v[{T}:{T+3}], v{V_L16}, s[{S_WS}:{S_WS+3}], s{S_T1} offen KVST ;@st"]
        if b_ == 3: g.append(f"s_add_u32 s{G_OA}, s{G_OA}, s{G_X1 if a_ % 2 == 0 else G_X2}")
        L.append(g)
        return L
    NSB = 5
    pairs_of = {b: list(range((32*b)//NSB, (32*(b+1))//NSB)) for b in range(NSB)}
    def tagd(L, tag): return [[(i + f" ;@{tag}" if i.startswith("buffer") else i) for i in g] for g in L]
    lines = ["VMQ C0*8 C1*8 C2*8", "WAITVM C0", "s_barrier"] + p1_xrd(0) + [f"v_add_u32 v{V_L16B}, 4096, v{V_L16}"]
    for j in range(D):
        r0, r1 = p1_rd(j); lines += r0 + r1
    pend = tagd(p1_dma(pslot(3)), "C3")
    lines += fl(pend[:2]); pend = pend[2:]
    for c in range(14):
        last = c == 13
        M = []
        for j in range(24):
            for v in ((0, 1) if j % 2 == 0 else (1, 0)):
                ac = pacc(j, v)
                M.append(f"{MF} {ac}, {ar(FA+4*(j%6),4)}, {xb(c,v)}, {'0' if (c == 0 and j < 16) else ac}")
        W = Weave(M)
        for j in range(24):
            if j % 2 == 0: W.pre[2*j].append(f"WAITLDS f{j+1}")
            j2 = j + D
            if j2 == 24 and not last:
                W.post[2*j] += (["s_waitcnt vmcnt(0)", "VMQ"] if c == NSB else [f"WAITVM C{c+1}"]) + ["s_barrier"] + p1_xrd(c + 1)
                if c == NSB: W.post[2*j].append("HOOK sig2")
            if j2 < 24 or not last:
                r0, r1 = p1_rd(j2 % 24)
                W.post[2*j] += r0; W.post[2*j+1] += r1
        if not last:
            dl = (pslot(c+1) - pslot(c)) & 0xffffffff
            W.post[9].append(f"v_add_u32 v{V_RX}, {dl:#x}, v{V_RX}")
            for p in range(8): W.post[2*(12+p)+1].append(f"v_add_u32 v{V_RB+p}, {dl:#x}, v{V_RB+p}")
        if pend: W.at(pend, [1, 5, 9, 13, 17, 21] if c == NSB else [3, 9, 15, 21, 27, 33]); pend = []
        if c + 4 <= 13:
            pend = tagd(p1_dma(pslot(c+4)), f"C{c+4}")
            W.at(pend[:2], [41, 45]); pend = pend[2:]
        if c == 11: W.at(kv_dma(False, 2*32768)[:2], [41, 45])
        if c == 12: W.spread(kv_dma(False, 2*32768)[2:] + kv_dma(False, 3*32768)[:6], 1, 48)
        if c == 13: W.spread(kv_dma(False, 3*32768)[6:] + kv_dma(True, 4*32768), 1, 44)
        ex = []
        if c < NSB:
            for p in pairs_of[c]: ex += pair_out(p)
        if c in (8, 9, 10, 11):
            ex += [f"v_mov_b32 v{OL+32*(c-8)+r}, 0" for r in range(32)]
        if ex: W.spread(ex, 2 if c == 0 else 0, 48)
        lines += W.lines()
        if c == 9: lines.append("HOOK ld2")
        if c == 10: lines.append("HOOK poll2")
    lines, _ = resolve_lds(lines, [])
    q = []; out = []
    for ln in lines:
        if ln.startswith("VMQ"):
            q = []
            for tk in ln.split()[1:]:
                t, n_ = tk.split("*"); q += [t]*int(n_)
            continue
        if ln.startswith("WAITVM"):
            tag = ln.split()[1]
            idx = max((i for i, t in enumerate(q) if t == tag), default=-1)
            if idx >= 0:
                n_ = len(q) - idx - 1; q = q[idx+1:]; out.append(f"s_waitcnt vmcnt({n_})")
            continue
        if ln.startswith(("buffer_", "global_")):
            q.append(ln.split(";@")[1].strip() if ";@" in ln else None); ln = ln.split(";@")[0].strip()
            assert len(q) < 60
        out.append(ln)
    ool = []
    fld2 = f"buffer_load_dword v{V_T4}, v{V_T3}, s[{S_WS}:{S_WS+3}], s{S_T2} offen sc1"
    for ln in out:
        if "KVST" in ln:
            k = len(ool)
            A(f"s_cmp_lg_u32 s{G_PURE}, 0")
            A(f"s_cbranch_scc1 L_{N}_wt{k}")
            A(ln.replace(" KVST", ""))
            A.label(f"L_{N}_wr{k}")
            ool.append(ln.replace("KVST", "sc1"))
        elif ln.startswith("HOOK"):
            hk = ln.split()[1]; lab = f"L_{N}_{hk}"
            A(f"s_cmp_lg_u32 s{S_WAVE}, 0")
            A(f"s_cbranch_scc1 {lab}")
            if hk == "sig2":
                A(f"v_mov_b32 v{V_T3}, 0"); A(f"v_mov_b32 v{V_T4}, 1")
                A("s_mov_b64 exec, 1")
                A(f"buffer_atomic_add v{V_T4}, v{V_T3}, s[{S_WS}:{S_WS+3}], s{G_HF} offen")
                A("s_mov_b64 exec, -1")
            elif hk == "ld2":
                A(f"s_lshl_b32 s{S_T2}, s{S_H}, 7"); A(f"s_add_u32 s{S_T2}, s{S_T2}, {FLG_OFF}")
                A(fld2)
            else:
                spin(f"L_{N}_pl2", fld2, V_T4, 16, 6)
            A.label(lab)
        else: A(ln)
    stmp("P1")
    def nxt(d, s): return [f"s_add_u32 s{d}, s{s}, 32768", f"s_cmp_eq_u32 s{d}, s{S_REND}", f"s_cselect_b32 s{d}, 0, s{d}"]
    A("s_barrier")
    A(f"s_mov_b32 s{S_T0}, {f32(math.log2(math.e)/16.0)}")
    A(f"s_mov_b32 s{S_T1}, s{S_T0}")
    A(f"s_lshl_b32 s{S_T2}, s{S_RR}, 14")
    A(f"v_add_u32 v{V_T3}, s{S_T2}, v{V_L16}")
    A(f"s_lshl_b32 s{S_CNT}, s{S_ROLE}, 15")
    A(f"s_sub_u32 s{S_T2}, 32768, s{S_CNT}")
    A(f"v_add_u32 v{V_T4}, s{S_T2}, v{V_T3}")
    for k in range(16):
        src = (8*k if k < 8 else 160 + 8*(k - 8)); b = S + 8*(k % 4); t = F + 4*(k % 4)
        for e in range(8): A(f"v_accvgpr_read_b32 v{b+e}, a{src+e}")
        for e in range(4): A(f"v_pk_mul_f32 v[{b+2*e}:{b+2*e+1}], v[{b+2*e}:{b+2*e+1}], s[{S_T0}:{S_T1}]")
        for e in range(4): A(f"v_cvt_pk_bf16_f32 v{t+e}, v{b+2*e}, v{b+2*e+1}")
        A(f"ds_write_b128 v{V_T4}, {vr(t,4)} offset:{k*1024}")
    A(f"s_lshl_b32 s{S_T2}, s2, 15")
    A(f"s_add_u32 s{S_T2}, s{S_T2}, s{S_KVO}")
    A(f"s_add_u32 s{S_PX}, s{S_T2}, {HST_OFF}")
    def hpart(k):
        b = S + 8*(k % 4); t = F + 16 + 4*(k % 4)
        for e in range(8): A(f"v_accvgpr_read_b32 v{b+e}, a{96+8*k+e}")
        for e in range(8): A(f"v_max_f32 v{b+e}, 0, v{b+e}")
        for e in range(4): A(f"v_pk_mul_f32 v[{b+2*e}:{b+2*e+1}], v[{b+2*e}:{b+2*e+1}], v[{b+2*e}:{b+2*e+1}]")
        for e in range(4): A(f"v_cvt_pk_bf16_f32 v{t+e}, v{b+2*e}, v{b+2*e+1}")
        A(f"buffer_store_dwordx4 {vr(t,4)}, v{V_L16 if k < 4 else V_L16B}, s[{S_WS}:{S_WS+3}], s{S_PX} offen offset:{(k%4)*1024}")
    for k in range(4): hpart(k)
    A("s_waitcnt lgkmcnt(0)")
    A("s_barrier")
    for k in range(16): A(f"ds_read_b128 {ar(QS+4*k,4)}, v{V_T3} offset:{k*1024}")
    for k in range(16): A(f"ds_read_b128 {ar(QL+4*k,4)}, v{V_T3} offset:{32768 + k*1024}")
    for k in range(4, 8): hpart(k)
    for r in range(16): A(f"v_mov_b32 v{NM+r}, 0")
    for r in [V_NM0, V_NM0+1] + list(range(V_LS, V_LS+16)): A(f"v_mov_b32 v{r}, 0")
    for r in range(4): A(f"v_mov_b32 v{ONES+r}, 0x3f803f80")
    A(f"s_lshl_b32 s{S_T0}, s{S_ROLE}, 14")
    A(f"v_add_u32 v{V_L16R}, s{S_T0}, v{V_L16}")
    A(f"v_lshrrev_b32 v{V_T0}, 4, v{V_LANE}")
    A(f"v_lshlrev_b32 v{V_T0}, 2, v{V_T0}")
    A(f"v_and_b32 v{V_THR}, 15, v{V_LANE}")
    A(f"v_sub_u32 v{V_THR}, v{V_THR}, v{V_T0}")
    for r in range(48): A(f"v_accvgpr_write_b32 a{OS+r}, 0")
    A(f"s_add_u32 s{S_D}, s{S_QB}, 1")
    A("s_waitcnt lgkmcnt(0)")
    stmp("P2")
    def frd(m16): return f"ds_read_b128 {vr(F + 4*(m16 % 8), 4)}, v{V_RD} offset:{m16*1024} ;@f{m16}"
    S_RO = S_DEL
    def bar_open(a, b, rd):
        L = ["s_waitcnt vmcnt(16)", "s_barrier"]
        if rd == "dyn": L += [f"s_add_u32 s{S_T0}, s{a}, s{S_RO}", f"v_add_u32 v{V_RD}, s{S_T0}, v{V_L16}"]
        else: L += [f"v_add_u32 v{V_RD}, s{a}, v{V_L16R if rd == 'own' else V_L16}"]
        return L
    def kvl(isV, jump, dma=True):
        p, j, jt = (S_VP, S_JV, S_JTV) if isV else (S_KP, S_JK, S_JTK)
        H = [[f"buffer_load_dwordx4 v{V_L16}, s[{S_WS}:{S_WS+3}], s{p} offen offset:{k*1024} sc1 lds"] for k in range(4)]
        T = [[f"buffer_load_dwordx4 v{V_L16B}, s[{S_WS}:{S_WS+3}], s{p} offen offset:{k*1024} sc1 lds"] for k in range(4)]
        if not dma: H = [[] for _ in H]; T = [[] for _ in T]
        H[3].append("s_add_u32 m0, m0, 4096")
        if dma: T[3].append(f"s_add_u32 s{p}, s{p}, 32768")
        if jump: T[3] += [f"s_cmp_eq_u32 s{p}, s{j}", f"s_cselect_b32 s{p}, s{jt}, s{p}"]
        return H, T
    def ptr_adv(a, b): return [f"s_add_u32 m0, s{S_KVO}, s{a}"] + nxt(a, b)
    def half(M, a, b, tail, head, fill, rd="own", last=False):
        W = Weave(M)
        for pr in range(8):
            g0 = 4*pr
            if pr % 2 == 0: W.pre[g0].append(f"WAITLDS f{2*pr+3}")
            m2 = 2*pr + 8
            if m2 == 16 and not last: W.post[g0+1] += bar_open(a, b, rd)
            if m2 < 16 or not last:
                W.post[g0+3].append(frd(m2 % 16))
                W.post[min(g0+4, len(M)-1)].append(frd((m2 + 1) % 16))
        if tail: W.at(tail, [2, 6, 10, 13])
        if not last:
            pa = ptr_adv(a, b)
            W.post[14] += pa[:2]; W.post[16] += pa[2:]
        if head: W.at(head, [18, 22, 26, 30])
        fill(W)
        return W
    def qk(q):
        M = []
        for pr in range(8):
            m = 2*pr; u, d = m // 8, m % 8
            v0 = pr % 2
            for (mm, v) in ((m, v0), (m+1, v0), (m+1, 1-v0), (m, 1-v0)):
                ac = vr(S + 8*v + 4*u, 4)
                first = d == 0 and ((v == v0 and mm == m) or (v != v0 and mm == m+1))
                M.append(f"{MF} {ac}, {vr(F+4*(mm%8),4)}, {ar(q + 4*(8*v + mm % 8), 4)}, {vr(NM + 8*v + 4*u, 4) if first else ac}")
        return M
    def oreg(o, b, v): return vr(OL + 64*v + 4*b, 4) if o == "L" else ar(OS + 64*v + 4*b, 4)
    def pv(o):
        M = []
        for m in range(16):
            for v in ((0, 1) if m % 2 == 0 else (1, 0)):
                M.append(f"{MF} {oreg(o,m,v)}, {vr(F+4*(m%8),4)}, {vr(P+4*v,4)}, {oreg(o,m,v)}")
        l = V_LL if o == "L" else V_LS
        for v in range(2): M.append(f"{MF} {vr(l+4*v,4)}, {vr(ONES,4)}, {vr(P+4*v,4)}, {vr(l+4*v,4)}")
        return M
    def cvts():
        return [f"v_cvt_pk_bf16_f32 v{P+4*v+2*u+k}, v{E+8*v+4*u+2*k}, v{E+8*v+4*u+2*k+1}" for u in range(2) for v in range(2) for k in range(2)]
    def exps(u): return [f"v_exp_f32 v{E+8*v+4*u+r}, v{S+8*v+4*u+r}" for v in range(2) for r in range(4)]
    def allmax():
        o = [S, S+1, S+2, S+3, S+8, S+9, S+10, S+11, S+4, S+5, S+6, S+7, S+12, S+13, S+14, S+15]
        L = [f"v_max3_f32 v{V_T0}, v{o[0]}, v{o[1]}, v{o[2]}"]
        for k in range(3, 15, 2): L.append(f"v_max3_f32 v{V_T0}, v{V_T0}, v{o[k]}, v{o[k+1]}")
        L.append(f"v_max_f32 v{V_T0}, v{V_T0}, v{o[15]}")
        return L
    def f_sum(l):
        def f(W):
            W.at(cvts(), [0, 1, 1, 4, 5, 5, 8, 9])
            W.at(exps(0)[:6], [20, 21, 24, 25, 28, 29])
        return f
    def f_exp(W):
        am = allmax()
        W.at(exps(0)[6:], [1, 5])
        W.at(am, [0, 2, 4, 6, 8, 10, 18, 22])
        W.at(exps(1), [9, 12, 20, 21, 24, 25, 28, 29])
        W.post[26].append(f"v_cmp_lt_f32 vcc, {THR}, v{V_T0}")
    pm_n = [0]
    def premask():
        lab = f"L_{N}_pm{pm_n[0]}"; pm_n[0] += 1
        A(f"s_sub_i32 s{S_D}, s{S_D}, 1")
        A(f"s_cmp_le_i32 s{S_D}, 0")
        A(f"s_cbranch_scc0 {lab}")
        A(f"s_lshl_b32 s{S_T0}, s{S_D}, 5")
        A(f"v_add_u32 v{V_T1}, s{S_T0}, v{V_THR}")
        A(f"v_mov_b32 v{V_T2}, {NEG}")
        A("s_nop 3")
        prs = (60, 62, 96, 98)
        for v in range(2):
            for u in range(2):
                for r in range(4): A(f"v_cmp_gt_i32 s[{prs[r]}:{prs[r]+1}], {16*(u-v) + r}, v{V_T1}")
                for r in range(4): A(f"v_cndmask_b32 v{NM+8*v+4*u+r}, v{NM+8*v+4*u+r}, v{V_T2}, s[{prs[r]}:{prs[r]+1}]")
        A("s_nop 1")
        A.label(lab)
    HK, TK = kvl(False, True); HV, TV = kvl(True, True)
    A(f"s_mov_b32 s{S_PA}, 0")
    A(f"s_mov_b32 s{S_PB}, 32768")
    pre = ptr_adv(S_PA, S_PB) + bar_open(S_PA, S_PB, "own")
    for m in range(8): pre.append(frd(m))
    for g in HK: pre += g
    pre, qa = resolve_lds(pre, [])
    flat(pre)
    def emit(lines):
        l2, q = resolve_lds(lines, qa)
        flat(l2)
        return q
    def chk(slow, ret):
        A(f"s_cbranch_vccnz {slow}")
        A.label(ret)
    def hot(lab, q, o, l, slow, ret, shared):
        rd = "x" if shared else "own"
        hk, tk = kvl(False, False, not shared); hv, tv = kvl(True, False, not shared)
        h1 = half(qk(q), S_PA, S_PB, tv, hk, f_sum(l), rd).lines()
        h2 = half(pv(o), S_PB, S_PA, tk, hv, f_exp, rd).lines()
        l1, qq = resolve_lds(h1, qa); assert qq == qa, (qq, qa)
        l2, qq = resolve_lds(h2, qa); assert qq == qa
        assert l1[0].startswith("s_waitcnt") and l1[1].startswith("v_mfma")
        flat(l1[:2])
        A(".p2align 3")
        A.label(lab)
        flat(l1[2:]); flat(l2)
        chk(slow, ret)
        A(f"s_sub_u32 s{S_CNT}, s{S_CNT}, 1")
        flat(l1[:2])
        A(f"s_cbranch_scc0 {lab}")
    def cold(q, o, l, slow, ret, rd1, rd2, resetnm=False):
        if resetnm:
            for r in range(16): A(f"v_mov_b32 v{NM+r}, 0")
            A(f"v_mov_b32 v{V_NM0}, 0"); A(f"v_mov_b32 v{V_NM0+1}, 0")
            A(f"s_sub_u32 s{S_D}, s{S_QBL}, 32")
        premask()
        emit(half(qk(q), S_PA, S_PB, TV, HK, f_sum(l), rd1).lines())
        emit(half(pv(o), S_PB, S_PA, TK, HV, f_exp, rd2).lines())
        if slow is not None: chk(slow, ret)
    def slowpath(lab, rets, o, l, first):
        for k, (e, r) in enumerate(rets):
            A.label(e)
            A(f"s_mov_b32 s{S_T1}, {k}")
            if k + 1 < len(rets): A(f"s_branch {lab}")
        A.label(lab)
        for i in max_tree(): A(i)
        groupop(A, (V_MX, V_MX+1), (V_T0, V_T1), "v_max_f32")
        if not first:
            for v in range(2): A(f"v_max_f32 v{V_MX+v}, 0, v{V_MX+v}")
            for v in range(2): A(f"v_exp_f32 v{V_F0+v}, -v{V_MX+v}")
            A("s_nop 0")
            for v in range(2): A(f"v_mul_f32 v{l+4*v}, v{l+4*v}, v{V_F0+v}")
            if o == "L":
                for r in range(128): A(f"v_mul_f32 v{OL+r}, v{OL+r}, v{V_F0 + r//64}")
            else:
                for r in range(0, 128, 4):
                    for e in range(4): A(f"v_accvgpr_read_b32 v{E+e}, a{OS+r+e}")
                    for e in range(4): A(f"v_mul_f32 v{E+e}, v{E+e}, v{V_F0 + r//64}")
                    for e in range(4): A(f"v_accvgpr_write_b32 a{OS+r+e}, v{E+e}")
        for r in range(16):
            A(f"v_sub_f32 v{S+r}, v{S+r}, v{V_MX + r//8}")
            A(f"v_sub_f32 v{NM+r}, v{NM+r}, v{V_MX + r//8}")
            A(f"v_exp_f32 v{E+r}, v{S+r}")
        for v in range(2): A(f"v_sub_f32 v{V_NM0+v}, v{V_NM0+v}, v{V_MX+v}")
        for k, (e, r) in enumerate(rets[:-1]):
            A(f"s_cmp_eq_u32 s{S_T1}, {k}")
            A(f"s_cbranch_scc1 {r}")
        A(f"s_branch {rets[-1][1]}")
    zer = [f"v_accvgpr_write_b32 a{OS+r}, 0" for r in range(48, 128)]
    premask()
    A(f"s_cmp_eq_u32 s{S_ROLE}, 0")
    A(f"s_cbranch_scc0 L_{N}_Ystart")
    emit(half(qk(QL), S_PB, S_PA, TK, HV, lambda W: None).lines())
    A(f"s_mov_b32 s{S_CNT}, 32")
    A("s_nop 7")
    A(f"s_branch L_{N}_eFB")
    A.label(f"L_{N}_Ystart")
    emit(half(qk(QS), S_PB, S_PA, TK, HV, lambda W: W.spread(zer, 0, 32)).lines())
    A("s_nop 7")
    A(f"s_branch L_{N}_eFA")
    A.label(f"L_{N}_segA")
    A(f"s_lshl_b32 s{S_CNT}, s{S_I}, 1")
    A(f"s_cmp_eq_u32 s{S_I}, 0")
    A(f"s_cbranch_scc1 L_{N}_coldA2")
    A(f"s_sub_u32 s{S_CNT}, s{S_CNT}, 1")
    A(f"s_sub_i32 s{S_D}, s{S_D}, s{S_CNT}")
    A(f"s_sub_u32 s{S_CNT}, s{S_CNT}, 1")
    hot(f"L_{N}_hotA", QS, "S", V_LS, f"L_{N}_eA0", f"L_{N}_rA0", True)
    A(f"s_mov_b32 s{S_RO}, 0")
    A(f"s_mov_b32 s{S_KP}, s{S_JTK}")
    A(f"s_sub_u32 s{S_VP}, s{S_JV}, 65536")
    A(f"s_branch L_{N}_coldA")
    A.label(f"L_{N}_coldA2")
    A(f"s_mov_b32 s{S_RO}, 16384")
    A.label(f"L_{N}_coldA")
    cold(QS, "S", V_LS, f"L_{N}_eA1", f"L_{N}_rA1", "x", "dyn")
    A(f"s_cmp_eq_u32 s{S_RO}, 0")
    A(f"s_cbranch_scc1 L_{N}_coldA2")
    cold(QL, "S", V_LS, None, None, "x", "own", resetnm=True)
    A(f"s_lshl_b32 s{S_T0}, s{S_I}, 1")
    A(f"s_sub_u32 s{S_CNT}, 30, s{S_T0}")
    A(f"s_branch L_{N}_eFB")
    for k, ln in enumerate(ool):
        A.label(f"L_{N}_wt{k}")
        A(ln)
        A(f"s_branch L_{N}_wr{k}")
    slowpath(f"L_{N}_spA", [(f"L_{N}_eA0", f"L_{N}_rA0"), (f"L_{N}_eA1", f"L_{N}_rA1")], "S", V_LS, False)
    slowpath(f"L_{N}_spB", [(f"L_{N}_eB0", f"L_{N}_rB0"), (f"L_{N}_eB1", f"L_{N}_rB1")], "L", V_LL, False)
    slowpath(f"L_{N}_spF", [(f"L_{N}_eFA", f"L_{N}_segA"), (f"L_{N}_eFB", f"L_{N}_segB")], None, None, True)
    A.label(f"L_{N}_segB")
    A(f"s_cmp_eq_u32 s{S_CNT}, 0")
    A(f"s_cbranch_scc1 L_{N}_tail")
    A(f"s_cmp_eq_u32 s{S_CNT}, 2")
    A(f"s_cbranch_scc1 L_{N}_coldB0")
    A(f"s_sub_u32 s{S_CNT}, s{S_CNT}, 2")
    A(f"s_sub_i32 s{S_D}, s{S_D}, s{S_CNT}")
    A(f"s_sub_u32 s{S_CNT}, s{S_CNT}, 1")
    hot(f"L_{N}_hotB", QL, "L", V_LL, f"L_{N}_eB0", f"L_{N}_rB0", False)
    A.label(f"L_{N}_coldB0")
    A(f"s_mov_b32 s{S_CNT}, 1")
    srd(A, S_A, PT+4, 4096*448*2)
    srd(A, S_Bw, PT+6, 1792*448*2)
    A(f"s_lshl_b32 s{S_T0}, s{S_H}, 4")
    A(f"s_add_u32 s{S_T0}, s{S_T0}, s{S_I}")
    A(f"s_mul_i32 s{S_PQ}, s{S_T0}, 14336")
    A(f"s_lshr_b32 s{S_P1}, s{S_PQ}, 1")
    A(f"s_mul_i32 s{S_T0}, s{S_RR}, 7168")
    A(f"s_add_u32 s{S_PQ}, s{S_PQ}, s{S_T0}")
    A(f"v_lshlrev_b32 v{V_T3}, 7, v{V_LANE}")
    A(f"v_min_u32 v{V_T3}, 7040, v{V_T3}")
    A(f"buffer_load_dword v127, v{V_T3}, s[{S_A}:{S_A+3}], s{S_PQ} offen")
    A(f"buffer_load_dword v127, v{V_T3}, s[{S_Bw}:{S_Bw+3}], s{S_P1} offen")
    A.label(f"L_{N}_coldB")
    cold(QL, "L", V_LL, f"L_{N}_eB1", f"L_{N}_rB1", "own", "own")
    A(f"s_sub_u32 s{S_CNT}, s{S_CNT}, 1")
    A(f"s_cbranch_scc0 L_{N}_coldB")
    A.label(f"L_{N}_tail")
    flat(cvts())
    A("s_nop 1")
    flat(pv("L")[32:])
    A(f"v_lshrrev_b32 v{V_T0}, 3, v{V_LANE}")
    A(f"v_and_b32 v{V_T1}, 6, v{V_T0}")
    A(f"v_mul_u32_u24 v{V_T0}, 896, v{V_T0}")
    A(f"v_and_b32 v{V_T2}, 7, v{V_LANE}")
    A(f"v_xor_b32 v{V_T1}, v{V_T1}, v{V_T2}")
    A(f"v_lshl_add_u32 v{V_DO5}, v{V_T1}, 4, v{V_T0}")
    for c in range(1, 4): A(f"v_add_u32 v{V_DO5+c}, {c*(7168-1024)}, v{V_DO5}")
    srd(A, S_A, PT+4, 4096*448*2)
    srd(A, S_Bw, PT+6, 1792*448*2)
    A(f"s_lshl_b32 s{S_T0}, s{S_H}, 8")
    A(f"s_lshl_b32 s{S_T1}, s{S_WAVE}, 6")
    A(f"s_add_u32 s{S_T0}, s{S_T0}, s{S_T1}")
    A(f"s_mul_i32 s{S_PQ}, s{S_T0}, 896")
    A(f"s_lshr_b32 s{S_P1}, s{S_PQ}, 1")
    A(f"s_add_u32 s{S_W2K}, s{S_W4}, 32768")
    def o_dma(slot):
        L = []
        for c in range(12):
            g = []
            if c == 0: g += [f"s_add_u32 m0, s{S_KVO}, {slot}", "s_nop 0"]
            if c == 4: g += ["s_add_u32 m0, m0, 4096", f"s_add_u32 s{S_DEL}, s{S_PQ}, {4*7168}"]
            if c == 8: g += [f"s_add_u32 m0, s{S_W2K}, {slot}", f"s_add_u32 s{S_PQ}, s{S_PQ}, 128"]
            sd, so = (S_A, S_PQ if c < 4 else S_DEL) if c < 8 else (S_Bw, S_P1)
            g.append(f"buffer_load_dwordx4 v{V_DO5+(c%4)}, s[{sd}:{sd+3}], s{so} offen offset:{(c%4)*1024} lds")
            if c == 11: g.append(f"s_add_u32 s{S_P1}, s{S_P1}, 128")
            L.append(g)
        return L
    ML = NM
    A(f"s_lshl_b32 s{S_T0}, s{S_WAVE}, 10")
    A(f"s_add_u32 s{S_T0}, s{S_T0}, 49152")
    A(f"v_add_u32 v{V_T3}, s{S_T0}, v{V_L16}")
    A(f"v_xor_b32 v{V_T4}, 2048, v{V_T3}")
    A(f"v_mov_b32 v{ML}, v{V_NM0}"); A(f"v_mov_b32 v{ML+1}, v{V_NM0+1}"); A(f"v_mov_b32 v{ML+2}, v{V_LL}"); A(f"v_mov_b32 v{ML+3}, v{V_LL+4}")
    A("s_waitcnt vmcnt(0) lgkmcnt(0)")
    A("s_barrier")
    A(f"ds_write_b128 v{V_T3}, {vr(ML,4)}")
    A(f"v_add_u32 v{V_RD}, {3*32768}, v{V_L16R}")
    pre = [frd(m) for m in range(8)]
    pre, qt = resolve_lds(pre, [])
    flat(pre)
    hl = [f"buffer_load_dwordx4 {vr(S+4*k,4)}, v{V_L16 if k < 4 else V_L16B}, s[{S_WS}:{S_WS+3}], s{S_PX} offen offset:{(k%4)*1024}" for k in range(8)]
    def tailfill(W):
        W.spread(o_dma("0"), 0, 32)
        W.post[18] += ["s_barrier", f"ds_read_b128 {vr(ML+4,4)}, v{V_T4} ;@ml"]
    l2, _ = resolve_lds(half(pv("L")[:32], None, None, None, None, tailfill, last=True).lines() + ["WAITLDS ml"], qt)
    flat(l2)
    flat(hl)
    stmp("attn")
    A("s_barrier")
    A(f"s_lshl_b32 s{S_T0}, s{S_RR}, 15")
    A(f"s_add_u32 s{S_T0}, s{S_T0}, 49152")
    A(f"v_add_u32 v{V_RD}, s{S_T0}, v{V_L16}")
    A(f"s_mul_i32 s{S_T0}, s{S_RR}, {80*1024}")
    A(f"s_add_u32 s{S_T0}, s{S_T0}, 65536")
    A(f"v_add_u32 v{V_THR}, s{S_T0}, v{V_L16}")
    od1 = o_dma("98304")
    def xaddr(k): return f"v{V_RD if k < 16 else V_THR} offset:{(k % 16)*1024}"
    FA_ = ML + 8
    A(f"s_cmp_eq_u32 s{S_ROLE}, 0")
    A(f"s_cbranch_scc1 L_{N}_cX")
    for k in range(32): A(f"ds_write_b128 {xaddr(k).split()[0]}, {vr(OL+4*k, 4)} {xaddr(k).split()[1]}")
    for v in range(2): A(f"v_rcp_f32 v{FA_+2*v}, v{V_LS+4*v}")
    A("s_waitcnt lgkmcnt(0)")
    A("s_barrier")
    for v in range(2): A(f"v_mov_b32 v{FA_+2*v+1}, v{FA_+2*v}")
    for k in range(32):
        T = F + 4*(k % 4); fa = FA_ + 2*(k // 16)
        if k % 2 == 0 and k < 24: flat(od1[k//2])
        for e in range(4): A(f"v_accvgpr_read_b32 v{T+e}, a{OS+4*k+e}")
        for e in range(2): A(f"v_pk_mul_f32 v[{T+2*e}:{T+2*e+1}], v[{T+2*e}:{T+2*e+1}], v[{fa}:{fa+1}]")
        A(f"v_cvt_pk_bf16_f32 v{OL+2*k}, v{T}, v{T+1}")
        A(f"v_cvt_pk_bf16_f32 v{OL+2*k+1}, v{T+2}, v{T+3}")
    A(f"s_branch L_{N}_cjoin")
    A.label(f"L_{N}_cX")
    steps = ["v_min_f32 v{mx}, v{nx}, v{ny}", "v_sub_f32 v{a}, v{mx}, v{nx}", "v_sub_f32 v{b}, v{mx}, v{ny}", "v_exp_f32 v{a}, v{a}", "v_exp_f32 v{b}, v{b}",
             "v_mul_f32 v{mx}, v{a}, v{lx}", "v_fmac_f32 v{mx}, v{b}, v{ly}", "v_rcp_f32 v{mx}, v{mx}", "s_nop 0",
             "v_mul_f32 v{a}, v{a}, v{mx}", "v_mul_f32 v{b}, v{b}, v{mx}", "v_mov_b32 v{a1}, v{a}", "v_mov_b32 v{b1}, v{b}"]
    for st_ in steps:
        for v in range(2):
            A(st_.format(mx=V_MX+v, nx=ML+v, ny=ML+4+v, lx=ML+2+v, ly=ML+6+v, a=FA_+2*v, a1=FA_+2*v+1, b=FA_+4+2*v, b1=FA_+5+2*v))
    for k in range(64):
        if k % 5 == 0 and k < 60: flat(od1[k//5])
        fa = FA_ + 2*(k // 32)
        A(f"v_pk_mul_f32 v[{OL+2*k}:{OL+2*k+1}], v[{OL+2*k}:{OL+2*k+1}], v[{fa}:{fa+1}]")
    A("s_barrier")
    for k in range(8): A(f"ds_read_b128 {vr(F+4*k, 4)}, {xaddr(k)}")
    for k in range(32):
        Y = F + 4*(k % 8); b = OL + 4*k; fb = FA_ + 4 + 2*(k // 16)
        A(f"s_waitcnt lgkmcnt({min(7, 31-k)})")
        for e in range(2): A(f"v_pk_fma_f32 v[{b+2*e}:{b+2*e+1}], v[{Y+2*e}:{Y+2*e+1}], v[{fb}:{fb+1}], v[{b+2*e}:{b+2*e+1}]")
        if k + 8 < 32: A(f"ds_read_b128 {vr(Y, 4)}, {xaddr(k+8)}")
        A(f"v_cvt_pk_bf16_f32 v{OL+2*k}, v{b}, v{b+1}")
        A(f"v_cvt_pk_bf16_f32 v{OL+2*k+1}, v{b+2}, v{b+3}")
    A.label(f"L_{N}_cjoin")
    RB5 = 8
    A(f"v_lshrrev_b32 v{V_T0}, 2, v{V_LANE}")
    A(f"v_lshlrev_b32 v{V_T0}, 7, v{V_T0}")
    A(f"v_and_b32 v{V_T1}, 3, v{V_LANE}")
    A(f"v_lshl_add_u32 v{V_T0}, v{V_T1}, 3, v{V_T0}")
    A(f"v_bfe_u32 v{V_T1}, v{V_LANE}, 3, 2")
    for p in range(4):
        A(f"v_xor_b32 v{V_T2}, {p}, v{V_T1}")
        A(f"v_lshl_add_u32 v{RB5+p}, v{V_T2}, 5, v{V_T0}")
    A("s_waitcnt vmcnt(12)")
    A("s_barrier")
    stmp("P4")
    AC0 = OL + 64; AC1 = OL + 80; PK = OL + 96; PK0 = OL + 104
    A(f"s_mul_i32 s{S_T0}, s{S_QB}, {28*16*1024}")
    A(f"s_lshl_b32 s{S_T1}, s{S_H}, 10")
    A(f"s_add_u32 s{S_T0}, s{S_T0}, s{S_T1}")
    A(f"s_add_u32 s{S_KP}, s{S_T0}, {SLAB_OFF}")
    A(f"s_mov_b32 s{S_VP}, {OOB}")
    A(f"s_mov_b32 s{S_PB}, 0")
    A(f"s_mov_b32 s{S_T2}, 49152")
    A(f"s_mov_b32 s{S_REND}, 98304")
    A(f"s_lshl_b32 s{S_JV}, s{S_I}, 7")
    A(f"s_add_u32 s{S_JV}, s{S_JV}, {FLG_OFF + 16*128}")
    A(f"v_mov_b32 v{V_T3}, 28")
    A(f"v_mov_b32 v{V_T4}, 1")
    def o_rd(j):
        mb, kk = j // 12, j % 12
        f = F + 4*(j % 8)
        return [f"ds_read_b64_tr_b16 {vr(f,2)}, v{RB5+mb} offset:{kk*4096} ;@f{j}", f"ds_read_b64_tr_b16 {vr(f+2,2)}, v{RB5+mb} offset:{kk*4096+2048} ;@f{j}"]
    def st(reg, off): return [f"s_add_u32 s{S_T1}, s{S_VP}, {off}", f"buffer_store_dwordx4 {vr(reg,4)}, v{V_L16}, s[{S_WS}:{S_WS+3}], s{S_T1} offen sc1"]
    cv0 = [f"v_cvt_pk_bf16_f32 v{PK0+e}, v{AC0+2*e}, v{AC0+2*e+1}" for e in range(8)]
    cv1 = [f"v_cvt_pk_bf16_f32 v{PK+e}, v{AC1+2*e}, v{AC1+2*e+1}" for e in range(8)]
    sig = [f"s_cmp_lg_u32 s{S_WAVE}, 0", "SKIP", "s_mov_b64 exec, 1",
           f"buffer_atomic_add v{V_T4}, v{V_T3}, s[{S_WS}:{S_WS+3}], s{S_JV} offen", "s_mov_b64 exec, -1", "ENDSKIP"]
    def bfr(v, kk): return vr(OL + 32*v + 4*kk, 4) if kk < 8 else vr(S + 16*v + 4*(kk - 8), 4)
    M = []
    for pr in range(24):
        j = 2*pr; mb, kk = j // 12, j % 12
        v0 = pr % 2
        for (jj, v) in ((j, v0), (j+1, v0), (j+1, 1-v0), (j, 1-v0)):
            ac = vr((AC1 if mb >= 2 else AC0) + 8*v + 4*(mb & 1), 4)
            first = kk == 0 and ((v == v0 and jj == j) or (v != v0 and jj == j+1))
            M.append(f"{MF} {ac}, {vr(F+4*(jj%8),4)}, {bfr(v, jj % 12)}, {'0' if first else ac}")
    W = Weave(M)
    D5 = 6
    for pr in range(24):
        g0 = 4*pr
        W.pre[g0].append(f"WAITLDS f{2*pr+1}")
        j2 = 2*pr + D5
        if j2 == 48: W.post[g0] += ["s_waitcnt vmcnt(12)", "s_barrier"]
        r = o_rd(j2 % 48) + o_rd((j2 + 1) % 48)
        for e in range(4): W.post[g0+e].append(r[e])
    W.at([st(PK0, 0), st(PK0+4, 16384)], [1, 5])
    W.spread(cv1, 6, 14)
    W.at([st(PK, 32768), st(PK+4, 49152)], [14, 17])
    W.spread(cv0, 56, 72)
    W.at(o_dma(f"s{S_T2}"), [21, 26, 31, 37, 42, 47, 53, 58, 63, 69, 74, 79])
    W.post[19] += [f"s_sub_u32 s{S_T0}, s{S_PB}, 49152", f"s_cselect_b32 s{S_T0}, s{S_REND}, s{S_T0}"]
    W.post[22] += [f"s_sub_u32 s{S_JK}, s{S_T0}, s{S_PB}"]
    W.post[25] += [f"v_add_u32 v{RB5}, s{S_JK}, v{RB5}"]
    W.post[41] += [f"v_add_u32 v{RB5+1}, s{S_JK}, v{RB5+1}"]
    W.post[65] += [f"v_add_u32 v{RB5+2}, s{S_JK}, v{RB5+2}"]
    W.post[86] += [f"v_add_u32 v{RB5+3}, s{S_JK}, v{RB5+3}"]
    W.post[29] += [f"s_mov_b32 s{S_VP}, s{S_KP}", f"s_add_u32 s{S_KP}, s{S_KP}, 65536"]
    W.post[82] += [f"s_mov_b32 s{S_T2}, s{S_PB}", f"s_mov_b32 s{S_PB}, s{S_T0}"]
    W.post[87] += sig
    W.post[90] += [f"s_cmp_ge_u32 s{S_CNT}, 4", f"s_cselect_b32 s{S_PQ}, {OOB}, s{S_PQ}"]
    W.post[91] += [f"s_cselect_b32 s{S_P1}, {OOB}, s{S_P1}"]
    W.post[93] += [f"v_and_b32 v{V_T3}, 28, v{V_T2}", f"v_add_u32 v{V_T2}, 4, v{V_T2}"]
    W.post[94] += [f"s_add_u32 s{S_CNT}, s{S_CNT}, 1"]
    W.post[95] += [f"s_cmp_lt_u32 s{S_CNT}, 7"]
    skn = [0]
    def flat_skip(L):
        for i in L:
            if i == "SKIP": A(f"s_cbranch_scc1 L_{N}_sk{skn[0]}")
            elif i == "ENDSKIP": A.label(f"L_{N}_sk{skn[0]}"); skn[0] += 1
            else: A(i)
    pre = []
    for j in range(D5): pre += o_rd(j)
    pre, qo = resolve_lds(pre, [])
    flat(pre)
    A(f"s_mov_b32 s{S_CNT}, 0")
    A(f"v_mov_b32 v{V_T2}, 0")
    A(".p2align 3")
    A.label(f"L_{N}_p5")
    l2, q1 = resolve_lds(W.lines(), qo)
    assert q1 == qo
    flat_skip(l2)
    A(f"s_cbranch_scc1 L_{N}_p5")
    A(f"s_load_dwordx2 s[{PT}:{PT+1}], s[0:1], 0")
    A(f"s_load_dwordx4 s[{PT+4}:{PT+7}], s[0:1], 80")
    flat(st(PK0, 0)); flat(st(PK0+4, 16384))
    A("s_nop 1")
    flat(cv1)
    flat(st(PK, 32768)); flat(st(PK+4, 49152))
    stmp("P5")
    A(f"v_and_b32 v{V_T0}, 15, v{V_LANE}")
    A(f"v_mul_u32_u24 v{V_T0}, 896, v{V_T0}")
    A(f"v_lshrrev_b32 v{V_T1}, 4, v{V_LANE}")
    A(f"v_lshlrev_b32 v{V_T1}, 3, v{V_T1}")
    A(f"v_add_u32 v{V_T0}, v{V_T0}, v{V_T1}")
    A(f"v_mov_b32 v{V_RD}, 0")
    A("s_waitcnt lgkmcnt(0)")
    srd(A, S_A, PT, 2048*448*2)
    srd(A, S_Bw, PT+4, 448*2)
    srd(A, S_C, PT+6, 2048*448*2)
    A("s_waitcnt vmcnt(0)")
    A("s_barrier")
    flat_skip(sig)
    stmp("drain")
    A.label(f"L_{N}_rloop")
    A(f"s_cmp_lg_u32 s{S_WAVE}, 0")
    A(f"s_cbranch_scc1 L_{N}_rw")
    A(f"v_mov_b32 v{V_T2}, 1")
    A(f"v_mov_b32 v{V_T3}, 32")
    A("s_mov_b64 exec, 1")
    A(f"buffer_atomic_add v{V_T2}, v{V_T3}, s[{S_WS}:{S_WS+3}], s{S_JV} offen sc0")
    A("s_mov_b64 exec, -1")
    A("s_waitcnt vmcnt(0)")
    A(f"v_readfirstlane_b32 s{S_T0}, v{V_T2}")
    A(f"s_cmp_ge_u32 s{S_T0}, 28")
    A(f"s_cbranch_scc1 L_{N}_rpost")
    A(f"s_and_b32 s{S_T1}, s{S_T0}, 28")
    A(f"v_mov_b32 v{V_T3}, s{S_T1}")
    fld3 = f"buffer_load_dword v{V_T4}, v{V_T3}, s[{S_WS}:{S_WS+3}], s{S_JV} offen sc1"
    A(fld3)
    spin(f"L_{N}_pl3", fld3, V_T4, 16, 0)
    A.label(f"L_{N}_rpost")
    A(f"v_mov_b32 v{V_T2}, s{S_T0}")
    A(f"ds_write_b32 v{V_RD}, v{V_T2}")
    A("s_waitcnt lgkmcnt(0)")
    A.label(f"L_{N}_rw")
    A("s_barrier")
    A(f"ds_read_b32 v{V_T2}, v{V_RD}")
    A(f"v_add_u32 v{V_RD}, 4, v{V_RD}")
    A("s_waitcnt lgkmcnt(0)")
    A(f"v_readfirstlane_b32 s{S_T0}, v{V_T2}")
    A("s_nop 3")
    A(f"s_cmp_ge_u32 s{S_T0}, 28")
    A(f"s_cbranch_scc1 L_{N}_fin")
    A(f"s_lshl_b32 s{S_T1}, s{S_I}, 1")
    A(f"s_sub_u32 s{S_T2}, 62, s{S_T1}")
    A(f"s_bitcmp1_b32 s{S_T0}, 1")
    A(f"s_cselect_b32 s{S_T1}, s{S_T2}, s{S_T1}")
    A(f"s_and_b32 s{S_T2}, s{S_T0}, 1")
    A(f"s_add_u32 s{S_QB}, s{S_T1}, s{S_T2}")
    A(f"s_and_b32 s{S_T0}, s{S_T0}, 28")
    A(f"s_add_u32 s{S_T0}, s{S_T0}, s{S_WAVE}")
    A(f"s_mul_i32 s{S_T1}, s{S_QB}, 28")
    A(f"s_add_u32 s{S_T1}, s{S_T1}, s{S_T0}")
    A(f"s_lshl_b32 s{S_KP}, s{S_T1}, 14")
    A(f"s_add_u32 s{S_KP}, s{S_KP}, {SLAB_OFF}")
    A(f"s_lshr_b32 s{S_JK}, s{S_T0}, 1")
    A(f"s_lshl_b32 s{S_JK}, s{S_JK}, 6")
    A(f"s_lshl_b32 s{S_T1}, s{S_QB}, 1")
    A(f"s_add_u32 s{S_T1}, s{S_T1}, s{S_RR}")
    A(f"s_mul_i32 s{S_JTK}, s{S_T1}, {16*896}")
    A(f"s_add_u32 s{S_JTK}, s{S_JTK}, s{S_JK}")
    R0 = 32
    for h in range(16):
        if h % 4 == 0 and h: A(f"s_add_u32 s{S_KP}, s{S_KP}, 4096")
        A(f"buffer_load_dwordx4 v[{R0+4*h}:{R0+4*h+3}], v{V_L16}, s[{S_WS}:{S_WS+3}], s{S_KP} offen offset:{(h % 4)*1024} sc1")
    b = R0 + 64
    A(f"buffer_load_dwordx2 v[{b}:{b+1}], v{V_T0}, s[{S_A}:{S_A+3}], s{S_JTK} offen")
    A(f"buffer_load_dwordx2 v[{b+2}:{b+3}], v{V_T0}, s[{S_A}:{S_A+3}], s{S_JTK} offen offset:32")
    A(f"buffer_load_dwordx2 v[{b+4}:{b+5}], v{V_T1}, s[{S_Bw}:{S_Bw+3}], s{S_JK} offen")
    A(f"buffer_load_dwordx2 v[{b+6}:{b+7}], v{V_T1}, s[{S_Bw}:{S_Bw+3}], s{S_JK} offen offset:32")
    AC = 192
    for h in range(18):
        A(f"s_waitcnt vmcnt({19-h if h < 16 else (2 if h == 16 else 0)})")
        for e in range(4):
            src = R0 + 4*h + e
            if h == 0:
                A(f"v_lshlrev_b32 v{AC+2*e}, 16, v{src}")
                A(f"v_and_b32 v{AC+1+2*e}, 0xffff0000, v{src}")
            else:
                A(f"v_lshlrev_b32 v{V_T3}, 16, v{src}")
                A(f"v_and_b32 v{V_T4}, 0xffff0000, v{src}")
                A(f"v_pk_add_f32 v[{AC+2*e}:{AC+1+2*e}], v[{AC+2*e}:{AC+1+2*e}], v[{V_T3}:{V_T4}]")
    for e in range(4): A(f"v_cvt_pk_bf16_f32 v{AC+8+e}, v{AC+2*e}, v{AC+1+2*e}")
    A(f"buffer_store_dwordx2 v[{AC+8}:{AC+9}], v{V_T0}, s[{S_C}:{S_C+3}], s{S_JTK} offen")
    A(f"buffer_store_dwordx2 v[{AC+10}:{AC+11}], v{V_T0}, s[{S_C}:{S_C+3}], s{S_JTK} offen offset:32")
    A(f"s_branch L_{N}_rloop")
    A.label(f"L_{N}_fin")
    if st_on:
        A("s_waitcnt vmcnt(0)")
        stmp("red")
        A(f"s_lshl_b32 s3, s2, 6")
        A(f"s_add_u32 s3, s3, {STAMP_OFF}")
        A("v_mov_b32 v2, 0")
        A("v_cmp_eq_u32 vcc, 0, v0")
        A("s_and_saveexec_b64 s[94:95], vcc")
        A(f"s_cbranch_execz L_{N}_end")
        if "D" in abl:
            idxs = [1, 2, 3, 4, 5, 6, 7, 9, 10]
            for i in range(1, sidx[0]):
                A(f"s_sub_u32 s3, s{64+2*i}, s64")
                A("v_mov_b32 v3, s3")
                A(f"global_atomic_umax v2, v3, s[100:101] offset:{4*idxs[i-1]}")
                A("s_nop 1")
            A("s_not_b32 s3, s64"); A("v_mov_b32 v3, s3"); A("global_atomic_umax v2, v3, s[100:101] offset:44"); A("s_nop 1")
            A(f"v_mov_b32 v3, s{64+2*(sidx[0]-1)}"); A("global_atomic_umax v2, v3, s[100:101] offset:48"); A("s_nop 1")
            A("v_mov_b32 v3, s64"); A("global_atomic_umax v2, v3, s[100:101] offset:52")
            A("s_endpgm")
        for i in range(sidx[0]):
            A(f"v_mov_b32 v3, s{64+2*i}")
            A(f"buffer_store_dword v3, v2, s[{S_WS}:{S_WS+3}], s3 offen offset:{4*i}")
            A("s_nop 1")
    A.label(f"L_{N}_end")
    A("s_endpgm")
    return A

if __name__ == "__main__":
    import sys
    st = len(sys.argv) > 1 and sys.argv[1] == "1"
    out = sys.argv[2] if len(sys.argv) > 2 else "m3.s"
    A1 = gen(st_on=st, abl=(sys.argv[3] if len(sys.argv) > 3 else ""))
    if "A" in (sys.argv[3] if len(sys.argv) > 3 else ""):
        from align import align
        ab_ = (sys.argv[3] if len(sys.argv) > 3 else '')
        A1.L = align(A1.L, nop_run=(1 if 'N' in ab_ else 5 if 'M' in ab_ else None))
    errs = check(A1.L, "m3")
    print("\n".join(errs[:40])); print("hazard errs:", len(errs), "lines", len(A1.L))
    hdr = open("parallel_sum__compressed_kv_cla__dense_activation_squared_relu__prompt.s.ref").read().split("; Override")[0]
    s = hdr + "; @launch kernel=fused_kernel grid=(256,1,1) block=(256,1,1) lds=163840\n" \
        + '.amdgcn_target "amdgcn-amd-amdhsa--gfx950"\n.text\n' + A1.text() + kd("fused_kernel", 512, 256)
    open(out, "w").write(s)
    print(NAMES)
```

```python
import re

class Asm:
    def __init__(self):
        self.L = []
    def __call__(self, s):
        for ln in s.split("\n"):
            ln = ln.strip()
            if ln: self.L.append(ln)
    def label(self, n): self.L.append(n + ":")
    def resolve_vm(self, start):
        q = []; out = []
        for ln in self.L[start:]:
            if ln.startswith("WAITVM"):
                tag = ln.split()[1]
                idx = max((i for i, t in enumerate(q) if t == tag), default=-1)
                if idx >= 0:
                    n = len(q) - idx - 1; q = q[idx+1:]
                    assert n <= 63, n
                    out.append(f"s_waitcnt vmcnt({n})")
                continue
            if ln.startswith(("buffer_", "global_")):
                tag = ln.split(";@")[1].strip() if ";@" in ln else None
                q.append(tag); ln = ln.split(";@")[0].strip()
                assert len(q) <= 63, "too many outstanding"
            out.append(ln)
        self.L[start:] = out
        return q
    def text(self): return "\n".join(("" if l.endswith(":") or l.startswith(".") or l.startswith(";") else "    ") + l for l in self.L) + "\n"

def resolve_lds(lines, q0):
    q = list(q0); out = []
    for ln in lines:
        if ln.startswith("WAITLDS"):
            tag = ln.split()[1]
            idx = max((i for i, t in enumerate(q) if t == tag), default=-1)
            if idx >= 0:
                n = min(len(q) - idx - 1, 15); q = q[len(q)-n:] if n else []
                out.append(f"s_waitcnt lgkmcnt({n})")
            continue
        if ln.startswith("ds_"):
            tag = ln.split(";@")[1].strip() if ";@" in ln else None
            q.append(tag); ln = ln.split(";@")[0].strip()
        if ln.startswith("s_waitcnt") and "lgkmcnt(0)" in ln: q = []
        out.append(ln)
    return out, q

def vr(b, n=1, k="v"):
    return f"{k}{b}" if n == 1 else f"{k}[{b}:{b+n-1}]"
def ar(b, n=1): return vr(b, n, "a")
def sr(b, n=1): return vr(b, n, "s")

class Weave:
    def __init__(self, mfmas):
        self.m = list(mfmas); n = len(self.m)
        self.pre = [[] for _ in range(n)]; self.post = [[] for _ in range(n)]
    def spread(self, instrs, g0, g1):
        n = len(instrs)
        for k, ins in enumerate(instrs):
            g = g0 + (k * (g1 - g0)) // n
            if isinstance(ins, (list, tuple)): self.post[g].extend(ins)
            else: self.post[g].append(ins)
    @staticmethod
    def cost(i):
        if i.startswith(("VMQ", "STAMP", "HOOK", "SKIP", "ENDSKIP")): return 0
        if i.startswith(("v_exp", "v_rcp", "buffer_", "global_")): return 2 + (1 if "KVST" in i else 0)
        return 1
    def load(self, g):
        c = sum(self.cost(i) for i in self.post[g])
        if g + 1 < len(self.m): c += sum(self.cost(i) for i in self.pre[g+1])
        return c
    def pack(self, instrs, g0, g1, cap=2):
        items = []
        for ins in instrs:
            items.append(list(ins) if isinstance(ins, (list, tuple)) else [ins])
        n = len(items); prev = g0
        for k, it in enumerate(items):
            c = sum(self.cost(i) for i in it)
            ideal = g0 + (k * (g1 - g0)) // n
            lo = max(prev, ideal - 3); hi = min(g1, max(lo + 1, ideal + 5))
            best = None
            for g in sorted(range(lo, hi), key=lambda g: abs(g - ideal)):
                if self.load(g) + c <= cap: best = g; break
            if best is None: best = min(range(lo, hi), key=lambda g: (self.load(g), abs(g - ideal)))
            self.post[best].extend(it); prev = best
    def excess(self, cap=2): return sum(max(0, self.load(g) - cap) for g in range(len(self.m)))
    def lines(self):
        L = []
        for i, m in enumerate(self.m):
            L += self.pre[i]; L.append(m); L += self.post[i]
        return L
    def at(self, instrs, gaps):
        assert len(instrs) == len(gaps), (len(instrs), len(gaps))
        for ins, g in zip(instrs, gaps):
            if isinstance(ins, (list, tuple)): self.post[g].extend(ins)
            else: self.post[g].append(ins)
    def emit(self, A):
        for i, m in enumerate(self.m):
            for p in self.pre[i]: A(p)
            A(m)
            for p in self.post[i]: A(p)

_reg = re.compile(r"\b([vas])(\d+)\b|\b([vas])\[(\d+):(\d+)\]")
def regs_of(op):
    out = set()
    op = op.strip()
    if op in ("vcc",): return {("s", 106), ("s", 107)}
    if op == "exec": return {("s", 126), ("s", 127)}
    if op == "m0": return {("s", 124)}
    for m in _reg.finditer(op):
        if m.group(1): out.add((m.group(1), int(m.group(2))))
        else:
            for r in range(int(m.group(4)), int(m.group(5)) + 1): out.add((m.group(3), r))
    return out

TRANS = ("v_exp_f32", "v_log_f32", "v_rcp_f32", "v_rsq_f32", "v_sqrt_f32", "v_sin_f32", "v_cos_f32")
def parse(line):
    line = line.split(";")[0].strip()
    if not line or line.endswith(":") or line.startswith("."): return None
    parts = line.split(None, 1)
    opc = parts[0]
    rest = parts[1] if len(parts) > 1 else ""
    ops = [o.strip() for o in re.split(r",(?![^\[]*\])", rest)] if rest else []
    mods = ""
    if ops:
        lp = ops[-1].split(None, 1)
        if len(lp) > 1: ops[-1] = lp[0]; mods = lp[1]
    d = dict(opc=opc, ops=ops, mods=mods, w=set(), r=set(), kind="other", line=line)
    R = [regs_of(o) for o in ops]
    if opc.startswith("v_mfma"):
        d["kind"] = "mfma"; d["w"] = R[0]; d["ab"] = R[1] | R[2]; d["c"] = R[3]; d["r"] = R[1] | R[2] | R[3]
        d["passes"] = 8 if "32x32x16" in opc else 4
    elif opc.startswith("v_cmp"):
        d["kind"] = "valu"; d["w"] = R[0]; d["r"] = set().union(*R[1:])
    elif opc.startswith("v_readfirstlane") or opc.startswith("v_readlane"):
        d["kind"] = "valu"; d["w"] = R[0]; d["r"] = set().union(*R[1:]); d["rl"] = True
    elif opc.startswith("v_permlane"):
        d["kind"] = "valu"; d["w"] = R[0] | R[1]; d["r"] = R[0] | R[1]; d["perm"] = True
    elif opc.startswith("v_"):
        d["kind"] = "valu"; d["w"] = set(R[0]); d["r"] = set().union(*R[1:]) if len(R) > 1 else set()
        if opc.startswith(("v_fmac", "v_pk_fmac", "v_dot2c")): d["r"] |= R[0]
        if opc.startswith(("v_add_co", "v_sub_co", "v_addc_co")): d["w"] |= R[1]
        if opc.startswith("v_cndmask") and len(ops) == 3: d["r"] |= regs_of("vcc")
        if opc.replace("_e32", "").replace("_e64", "") in TRANS: d["trans"] = True
        if "dpp" in opc or "row_" in mods or "quad_perm" in mods: d["dpp"] = True
    elif opc.startswith("ds_read") or opc.startswith("ds_bpermute") or opc.startswith("ds_swizzle"):
        d["kind"] = "ds"; d["w"] = R[0]; d["r"] = set().union(*R[1:])
    elif opc.startswith("ds_write"):
        d["kind"] = "ds"; d["r"] = set().union(*R)
    elif opc.startswith(("buffer_load", "global_load")):
        d["kind"] = "vmem"
        if "lds" in mods.split() or "_lds_" in opc:
            d["r"] = set().union(*R) | regs_of("m0"); d["dma"] = True
        else:
            d["w"] = R[0]; d["r"] = set().union(*R[1:])
    elif opc.startswith(("buffer_store", "global_store", "buffer_atomic", "global_atomic")):
        d["kind"] = "vmem"; d["r"] = set().union(*R)
        if "x4" in opc or "x3" in opc: d["wide"] = R[0] if opc.startswith("buffer") else R[1]
    elif opc.startswith("s_"):
        d["kind"] = "salu"
        if opc.startswith(("s_cmp", "s_cbranch", "s_branch", "s_waitcnt", "s_barrier", "s_nop", "s_endpgm", "s_setprio", "s_sleep", "s_bitcmp")):
            d["r"] = set().union(*R) if R else set()
        else:
            d["w"] = set(R[0]) if R else set(); d["r"] = set().union(*R[1:]) if len(R) > 1 else set()
            if "saveexec" in opc: d["w"] |= regs_of("exec")
    return d

def check(lines, name=""):
    ins = []
    for ln in lines:
        p = parse(ln)
        if p: ins.append(p)
    errs = []
    for i, c in enumerate(ins):
        dist = 0
        for j in range(i - 1, max(-1, i - 24), -1):
            p = ins[j]
            need = 0; why = ""
            def req(n, w):
                nonlocal need, why
                if n > need: need, why = n, w
            if p["kind"] == "valu":
                wv = {r for r in p["w"] if r[0] in "va"}; wsg = {r for r in p["w"] if r[0] == "s"}
                if c["kind"] == "mfma" and wv & c["r"]: req(2, "valu->mfma")
                if p.get("trans") and c["kind"] == "valu" and not c.get("trans") and wv & c["r"]: req(1, "trans->valu")
                if p.get("trans") and c["kind"] in ("ds", "vmem") and wv & c["r"]: req(1, "trans->mem")
                if c.get("rl") and wv & c["r"]: req(1, "valu->readlane")
                if c.get("perm") and wv & c["r"]: req(2, "valu->permlane")
                if c.get("dpp") and wv & c["r"]: req(2, "valu->dpp")
                if c["kind"] == "valu" and wsg & c["r"]: req(4 if c.get("rl") else 2, "valu sgpr->valu")
                if c["kind"] == "vmem" and wsg & c["r"]: req(5, "valu sgpr->vmem")
            if p["kind"] == "mfma":
                P = p["passes"]
                big = {8: 12, 4: 8}[P]
                if c["kind"] == "mfma":
                    if p["w"] & c["ab"]: req(big, "mfma->mfma AB")
                    if p["w"] & c["c"] and not (p["w"] == c["c"] and c["passes"] == P): req({8: 10, 4: 6}[P], "mfma->mfma C overlap")
                    if p["w"] & c["w"] and not (p["w"] & c["c"]): req({8: 10, 4: 6}[P], "mfma->mfma WAW(conservative)")
                elif c["kind"] == "valu":
                    if p["w"] & (c["r"] | c["w"]): req(big, "mfma->valu")
                    if p["c"] & c["w"]: req({8: 7, 4: 3}[P], "mfma C WAR")
                elif c["kind"] in ("ds", "vmem"):
                    if p["w"] & (c["r"] | c["w"]): req(big, "mfma->mem")
            if p["kind"] == "salu" and ("s", 124) in p["w"] and c.get("dma"): req(1, "m0->dma")
            if p.get("wide") and c["kind"] == "valu" and p["wide"] & c["w"]: req(2, "wide store WAR")
            if p.get("wide") and c["kind"] in ("ds", "vmem", "mfma") and p["wide"] & c["w"]: req(1, "wide store WAR")
            if need > dist:
                errs.append(f"{name}: need {need} have {dist} [{why}]: '{p['line']}' -> '{c['line']}'")
            if p["opc"] == "s_nop": dist += int(p["ops"][0], 0) + 1
            else: dist += 1
            if dist > 20: break
    return errs
```

```python
from asmlib import *
import struct, math
def f32(x): return hex(struct.unpack("<I", struct.pack("<f", x))[0])
XN_OFF = 0; KV_OFF = 0x200000; SLAB_OFF = 0x2200000; HST_OFF = 0x4000000; FLG_OFF = 0x5000000; STAMP_OFF = 0x8000000
WS_BYTES = 268435456
OOB = "0x40000000"
MF = "v_mfma_f32_16x16x32_bf16"
def srd(A, d, p, nbytes):
    A(f"s_mov_b32 s{d}, s{p}"); A(f"s_and_b32 s{d+1}, s{p+1}, 0xffff"); A(f"s_mov_b32 s{d+2}, {nbytes}"); A(f"s_mov_b32 s{d+3}, 0x00020000")
def kd(name, vgpr, accum, sgpr=102):
    return f""".section .rodata,"a"
.p2align 6
.amdhsa_kernel {name}
  .amdhsa_next_free_vgpr {vgpr}
  .amdhsa_next_free_sgpr {sgpr}
  .amdhsa_accum_offset {accum}
  .amdhsa_group_segment_fixed_size 0
  .amdhsa_kernarg_size 112
  .amdhsa_user_sgpr_count 2
  .amdhsa_user_sgpr_kernarg_segment_ptr 1
  .amdhsa_system_sgpr_workgroup_id_x 1
.end_amdhsa_kernel
"""
S_WS=4; S_A=8; S_Bw=12; S_C=16; S_Dd=20
S_WAVE=24; S_RR=25; S_ROLE=26; S_H=27; S_I=28; S_QB=29; S_QBL=30; S_KVO=31; S_W4=32; S_W2K=33
S_PA=34; S_PB=35; S_DEL=36; S_REND=37; S_KP=38; S_VP=39; S_T0=40; S_T1=41; S_T2=42; S_CNT=43
S_JK=44; S_JV=45; S_JTK=46; S_JTV=47; S_D=48; S_PQ=49; S_P1=50; S_PX=51
G_PURE=48; G_ISV=52; G_AS=53; G_WSO=54; G_AW=55; G_WP=56; G_CUR=57; G_DLT=58; G_TGT=59
G_ST=60; G_X1=96; G_HF=97; S_X0=98; S_X1=99; G_X2=36; G_OA=53
PT=84
V_LANE=1; V_L16=27; V_L16B=26; V_T3=28; V_T4=29; V_T0=30; V_T1=31
V_DO=2; V_DO5=124; V_RB=16; V_RX=8; V_RK=9; V_HT=10; V_T2=24
XB=240
V_RD=25; V_MX=18; V_NM0=20; V_THR=22; V_L16R=23; V_F0=28
V_LS=2; V_LL=10; ONES=120
F=32; S=64; E=80; NM=96; P=112
OL=128; QS=0; QL=64; OS=128
NEG = f32(-1e30); THR = f32(8.0)
RING = 163840
NAMES = []

def gacc(t): return vr(32 + 4*t, 4) if t < 56 else ar(64 + 4*(t - 56), 4)
def dpp_sum2(A, va, vb, sa, sb):
    for m in ("row_shr:1", "row_shr:2", "row_shr:4", "row_shr:8"):
        A(f"v_add_f32_dpp v{va}, v{va}, v{va} {m} row_mask:0xf bank_mask:0xf bound_ctrl:0")
        A(f"v_add_f32_dpp v{vb}, v{vb}, v{vb} {m} row_mask:0xf bank_mask:0xf bound_ctrl:0")
        A("s_nop 0")
    for m, rm in (("row_bcast:15", "0xa"), ("row_bcast:31", "0xc")):
        A(f"v_add_f32_dpp v{va}, v{va}, v{va} {m} row_mask:{rm} bank_mask:0xf")
        A(f"v_add_f32_dpp v{vb}, v{vb}, v{vb} {m} row_mask:{rm} bank_mask:0xf")
        A("s_nop 0")
    A(f"v_readlane_b32 s{sa}, v{va}, 63"); A(f"v_readlane_b32 s{sb}, v{vb}, 63"); A("s_nop 1")
def groupop(A, vs, ts, op):
    for sw in ("v_permlane16_swap_b32", "v_permlane32_swap_b32"):
        for v, t in zip(vs, ts): A(f"v_mov_b32 v{t}, v{v}")
        A("s_nop 1")
        for v, t in zip(vs, ts): A(f"{sw} v{v}, v{t}")
        A("s_nop 1")
        for v, t in zip(vs, ts): A(f"{op} v{v}, v{v}, v{t}")
def max_tree():
    L = []
    for v in range(2): L.append(f"v_max3_f32 v{V_MX+v}, v{S+8*v}, v{S+8*v+1}, v{S+8*v+2}")
    for v in range(2): L.append(f"v_max3_f32 v{V_MX+v}, v{V_MX+v}, v{S+8*v+3}, v{S+8*v+4}")
    for v in range(2): L.append(f"v_max3_f32 v{V_MX+v}, v{V_MX+v}, v{S+8*v+5}, v{S+8*v+6}")
    for v in range(2): L.append(f"v_max_f32 v{V_MX+v}, v{V_MX+v}, v{S+8*v+7}")
    return L

def gen(name="fused_kernel", st_on=False, abl=""):
    A = Asm(); N = name
    def flat(L):
        for g in L:
            for i in (g if isinstance(g, (list, tuple)) else [g]): A(i)
    def fl(L):
        o = []
        for g in L: o += (list(g) if isinstance(g, (list, tuple)) else [g])
        return o
    sidx = [0]
    def stmp(nm, wait=True):
        if "B" in abl and not (nm.startswith("b") or nm in ("start", "Gloop", "P1")): return
        if "B" not in abl and nm.startswith("b"): return
        if "G" in abl and not (nm.startswith("g") or nm in ("start", "Gpro", "Gloop")): return
        if "G" not in abl and nm.startswith("g"): return
        if "L" in abl and not (nm.startswith("l") or nm in ("start", "P2", "attn")): return
        if "L" not in abl and nm.startswith("l"): return
        if "T" in abl and not (nm.startswith("t") or nm in ("start", "P5", "drain", "red")): return
        if "T" not in abl and nm.startswith("t"): return
        if st_on:
            assert sidx[0] < 10
            A(f"{'s_memtime' if 'C' in abl else 's_memrealtime'} s[{64+2*sidx[0]}:{65+2*sidx[0]}]")
            if wait: A("s_waitcnt lgkmcnt(0)")
        NAMES.append(nm); sidx[0] += 1
    def spin(lab, load, vdst, target, first):
        A("s_mov_b32 s3, 0")
        A(f"s_waitcnt vmcnt({first})")
        A.label(lab)
        A(f"v_readfirstlane_b32 s{S_X0}, v{vdst}")
        A("s_add_u32 s3, s3, 1")
        A(f"s_cmp_ge_u32 s{S_X0}, {target}")
        A(f"s_cbranch_scc1 {lab}_ok")
        A("s_cmp_ge_u32 s3, 0x400000")
        A(f"s_cbranch_scc1 {lab}_ok")
        A("s_sleep 1")
        A(load)
        A("s_waitcnt vmcnt(0)")
        A(f"s_branch {lab}")
        A.label(f"{lab}_ok")
    A(f".p2align 8\n.type {name},@function")
    A.label(name)
    A("s_cmp_ge_u32 s2, 256")
    A(f"s_cbranch_scc1 L_{N}_end")
    stmp("start", False)
    A("s_getpc_b64 s[98:99]")
    A.label(f"L_{N}_pc")
    A("s_lshr_b32 s3, s2, 3")
    A("v_lshrrev_b32 v16, 3, v0")
    A("v_lshlrev_b32 v16, 5, v16")
    A("v_add_u32 v16, s3, v16")
    A("v_lshlrev_b32 v16, 7, v16")
    A(f"v_min_u32 v16, L_{N}_end - L_{N}_pc, v16")
    A("global_load_dword v25, v16, s[98:99]")
    A(f"s_load_dwordx4 s[{PT}:{PT+3}], s[0:1], 0")
    A(f"s_load_dwordx4 s[{PT+4}:{PT+7}], s[0:1], 24")
    A(f"s_load_dwordx2 s[{PT+8}:{PT+9}], s[0:1], 104")
    A(f"s_load_dwordx2 s[{PT+10}:{PT+11}], s[0:1], 64")
    A("s_load_dwordx2 s[100:101], s[0:1], 96")
    A(f"v_and_b32 v{V_LANE}, 63, v0")
    A("v_lshrrev_b32 v26, 6, v0")
    A(f"s_and_b32 s{S_T0}, s2, 7")
    A(f"v_readfirstlane_b32 s{S_WAVE}, v26")
    A(f"s_lshl_b32 s{S_T0}, s{S_T0}, 1")
    A(f"s_lshr_b32 s{S_I}, s2, 4")
    A(f"s_bfe_u32 s{S_T1}, s2, 0x10003")
    A(f"s_add_u32 s{S_H}, s{S_T0}, s{S_T1}")
    GH, GMT, GWM, GWN = S_JK, S_JV, S_JTK, S_JTV
    A(f"s_bfe_u32 s{GMT}, s2, 0x30003")
    A(f"s_bfe_u32 s{S_T1}, s2, 0x10006")
    A(f"s_add_u32 s{GH}, s{S_T0}, s{S_T1}")
    A(f"s_lshr_b32 s{G_ISV}, s2, 7")
    A(f"s_lshr_b32 s{GWM}, s{S_WAVE}, 1")
    A(f"s_and_b32 s{GWN}, s{S_WAVE}, 1")
    A(f"s_and_b32 s{S_RR}, s{S_WAVE}, 1")
    A(f"s_lshl_b32 s{S_KVO}, s{S_WAVE}, 13")
    A(f"s_add_u32 s{G_AW}, s{S_KVO}, 65536")
    A(f"s_lshl_b32 s{S_W4}, s{S_WAVE}, 12")
    A(f"s_mov_b32 s{G_WP}, s{S_W4}")
    def wrow_voffs(dst, sh, t0, t1, t2):
        L = [f"v_lshrrev_b32 v{t0}, 5, v{V_LANE}", f"s_lshl_b32 s{S_T0}, s{S_WAVE}, 3", f"v_add_u32 v{t1}, s{S_T0}, v{t0}",
             f"v_lshlrev_b32 v{t1}, 13, v{t1}", f"s_lshl_b32 s{S_T0}, s{sh}, 9", f"v_add_u32 v{t1}, s{S_T0}, v{t1}",
             f"v_lshlrev_b32 v{t0}, 1, v{t0}", f"v_and_b32 v{t2}, 31, v{V_LANE}", f"v_xor_b32 v{t0}, v{t0}, v{t2}",
             f"s_lshl_b32 s{S_T0}, s{S_RR}, 3", f"v_xor_b32 v{t0}, s{S_T0}, v{t0}",
             f"v_xor_b32 v{t2}, 4, v{t0}", f"v_lshl_add_u32 v{t0}, v{t0}, 4, v{t1}", f"v_lshl_add_u32 v{t2}, v{t2}, 4, v{t1}"]
        for c in range(4): L.append(f"v_add_u32 v{dst+c}, {2*c*8192 - c*1024}, v{t0 if c % 2 == 0 else t2}")
        return L
    flat(wrow_voffs(10, GH, 28, 29, 30))
    A(f"s_lshl_b32 s{S_T0}, s{GMT}, 8")
    A(f"s_lshl_b32 s{S_T1}, s{S_WAVE}, 6")
    A(f"s_add_u32 s{S_T0}, s{S_T0}, s{S_T1}")
    A(f"v_lshrrev_b32 v28, 3, v{V_LANE}")
    A(f"v_add_u32 v28, s{S_T0}, v28")
    A("v_lshlrev_b32 v28, 11, v28")
    A(f"v_lshrrev_b32 v29, 4, v{V_LANE}")
    A(f"v_and_b32 v30, 7, v{V_LANE}")
    A("v_xor_b32 v29, v29, v30")
    A("v_xor_b32 v30, 4, v29")
    A("v_lshl_add_u32 v29, v29, 4, v28")
    A("v_lshl_add_u32 v30, v30, 4, v28")
    for c in range(8): A(f"v_add_u32 v{2+c}, {8*c*2048 - (c & 3)*1024}, v{29 + (c & 1)}")
    LQ, LO = S_PQ, S_P1
    A(f"s_lshl_b32 s{LQ}, s2, 3")
    A(f"s_lshl_b32 s{S_T1}, s{S_WAVE}, 1")
    A(f"s_add_u32 s{LQ}, s{LQ}, s{S_T1}")
    A(f"s_mul_i32 s{LO}, s{LQ}, 896")
    A(f"v_lshlrev_b32 v{V_L16}, 4, v{V_LANE}")
    for r in range(100, 108): A(f"v_mov_b32 v{r}, 0")
    A(f"s_mov_b32 s{S_PA}, -1")
    A(f"s_mov_b32 s{S_PB}, 0x00ffffff")
    A(f"s_mov_b32 s{G_AS}, 0")
    A(f"s_mov_b32 s{G_WSO}, 0")
    A("s_waitcnt lgkmcnt(0)")
    srd(A, S_A, PT+2, 2048*1024*2)
    A(f"s_cmp_eq_u32 s{G_ISV}, 0")
    A(f"s_cselect_b32 s{PT+4}, s{PT+4}, s{PT+6}")
    A(f"s_cselect_b32 s{PT+5}, s{PT+5}, s{PT+7}")
    srd(A, S_Bw, PT+4, 1024*4096*2)
    srd(A, S_C, PT, 2048*448*2)
    A(f"s_mov_b64 exec, s[{S_PA}:{S_PB}]")
    A(f"buffer_load_dwordx4 v[100:103], v{V_L16}, s[{S_C}:{S_C+3}], s{LO} offen")
    A(f"buffer_load_dwordx4 v[104:107], v{V_L16}, s[{S_C}:{S_C+3}], s{LO} offen offset:896")
    A("s_mov_b64 exec, -1")
    def dmaW(m0):
        L = [[m0, "s_nop 0", f"buffer_load_dwordx4 v10, s[{S_Bw}:{S_Bw+3}], s{G_WSO} offen lds"]]
        for c in range(1, 4): L.append([f"buffer_load_dwordx4 v{10+c}, s[{S_Bw}:{S_Bw+3}], s{G_WSO} offen offset:{c*1024} lds"])
        L[-1].append(f"s_add_u32 s{G_WSO}, s{G_WSO}, {32*8192}")
        return L
    def dmaA(m0, hi):
        L = []
        for c in range(4*hi, 4*hi + 4):
            g = [m0, "s_nop 0"] if c % 4 == 0 else []
            g.append(f"buffer_load_dwordx4 v{2+c}, s[{S_A}:{S_A+3}], s{G_AS} offen offset:{(c & 3)*1024} lds")
            L.append(g)
        if hi: L[-1].append(f"s_add_u32 s{G_AS}, s{G_AS}, 128")
        return L
    flat(dmaW(f"s_add_u32 m0, s{G_WP}, 0")); flat(dmaW(f"s_add_u32 m0, s{G_WP}, 16384"))
    flat(dmaA(f"s_add_u32 m0, s{G_AW}, 0", 0)); flat(dmaA(f"s_add_u32 m0, s{G_AW}, 4096", 1))
    srd(A, S_WS, PT+8, WS_BYTES)
    srd(A, S_Dd, PT+10, 1792*2)
    A(f"s_load_dwordx2 s[{PT}:{PT+1}], s[0:1], 16")
    A(f"s_load_dwordx2 s[{PT+2}:{PT+3}], s[0:1], 56")
    A(f"s_load_dwordx2 s[{PT+4}:{PT+5}], s[0:1], 40")
    A(f"s_load_dwordx2 s[{PT+6}:{PT+7}], s[0:1], 72")
    A(f"v_and_b32 v28, 15, v{V_LANE}")
    A(f"s_lshl_b32 s{S_T0}, s{GWM}, 7")
    A(f"v_add_u32 v29, s{S_T0}, v28")
    A("v_lshlrev_b32 v29, 7, v29")
    A("v_add_u32 v29, 65536, v29")
    A("v_lshrrev_b32 v28, 1, v28")
    A(f"v_lshrrev_b32 v30, 4, v{V_LANE}")
    A("v_xor_b32 v28, v28, v30")
    A("v_lshl_add_u32 v14, v28, 4, v29")
    A("v_xor_b32 v28, 4, v28")
    A("v_lshl_add_u32 v15, v28, 4, v29")
    def nat_bases(dst, add, t0, t1, t2, rk=None):
        L = [f"v_bfe_u32 v{t0}, v{V_LANE}, 2, 2", f"v_lshrrev_b32 v{t1}, 4, v{V_LANE}", f"v_lshl_add_u32 v{t1}, v{t1}, 3, v{t0}"]
        if rk is not None: L.append(f"v_lshlrev_b32 v{rk}, 8, v{t1}")
        L += [f"v_lshlrev_b32 v{t1}, 9, v{t1}", f"v_and_b32 v{t2}, 3, v{V_LANE}", f"v_lshl_add_u32 v{t1}, v{t2}, 3, v{t1}",
              f"v_add_u32 v{t1}, {add}, v{t1}", f"v_bfe_u32 v{t0}, v{V_LANE}, 2, 3"]
        for p in range(8):
            L.append(f"v_xor_b32 v{t2}, {p}, v{t0}")
            L.append(f"v_lshl_add_u32 v{dst+p}, v{t2}, 5, v{t1}")
        return L
    A(f"s_lshl_b32 s{S_T1}, s{GWN}, 8")
    flat(nat_bases(16, f"s{S_T1}", 28, 29, 31))
    A(f"s_lshl_b32 s{S_T0}, s{GH}, 6")
    A(f"s_lshl_b32 s{S_T1}, s{GMT}, 3")
    A(f"s_add_u32 s{S_T0}, s{S_T0}, s{S_T1}")
    A(f"s_lshl_b32 s{S_T1}, s{GWM}, 2")
    A(f"s_add_u32 s{S_T0}, s{S_T0}, s{S_T1}")
    A(f"s_lshl_b32 s{S_T0}, s{S_T0}, 15")
    A(f"s_lshl_b32 s{S_T1}, s{G_ISV}, 14")
    A(f"s_add_u32 s{S_T0}, s{S_T0}, s{S_T1}")
    A(f"s_add_u32 s{S_T0}, s{S_T0}, {KV_OFF}")
    A(f"s_add_u32 s{S_T1}, s{G_ISV}, 12")
    A(f"s_lshl_b32 s{S_T1}, s{GWN}, s{S_T1}")
    A(f"s_add_u32 s{G_ST}, s{S_T0}, s{S_T1}")
    A(f"s_cmp_eq_u32 s{G_ISV}, 0")
    A(f"s_cselect_b32 s{G_X1}, 8, 4")
    A(f"s_cselect_b32 s{G_X2}, 24, 28")
    A(f"s_lshl_b32 s{G_X1}, s{G_X1}, 10")
    A(f"s_lshl_b32 s{G_X2}, s{G_X2}, 10")
    A(f"s_lshl_b32 s{G_HF}, s{GH}, 7")
    A(f"s_add_u32 s{G_HF}, s{G_HF}, {FLG_OFF}")
    A(f"s_lshr_b32 s{S_ROLE}, s{S_WAVE}, 1")
    A(f"s_lshl_b32 s{S_T0}, s{S_I}, 1")
    A(f"s_sub_u32 s{S_QBL}, 62, s{S_T0}")
    A(f"s_add_u32 s{S_QBL}, s{S_QBL}, s{S_RR}")
    A(f"s_add_u32 s{S_T1}, s{S_T0}, s{S_RR}")
    A(f"s_cmp_eq_u32 s{S_ROLE}, 0")
    A(f"s_cselect_b32 s{S_QB}, s{S_QBL}, s{S_T1}")
    A(f"s_lshl_b32 s{S_W2K}, s{S_WAVE}, 11")
    A(f"s_add_u32 s{S_W2K}, s{S_W2K}, 16384")
    A(f"s_lshl_b32 s{S_T0}, s{S_H}, 21")
    A(f"s_add_u32 s{S_T0}, s{S_T0}, {KV_OFF}")
    A(f"s_lshl_b32 s{S_T1}, s{S_RR}, 13")
    A(f"s_add_u32 s{S_KP}, s{S_T0}, s{S_T1}")
    A(f"s_add_u32 s{S_VP}, s{S_KP}, 16384")
    A(f"s_lshl_b32 s{S_T1}, s{S_I}, 16")
    A(f"s_add_u32 s{S_T1}, s{S_T1}, 65536")
    A(f"s_cmp_eq_u32 s{S_ROLE}, 0")
    A(f"s_cselect_b32 s{S_T1}, 1, s{S_T1}")
    A(f"s_add_u32 s{S_JK}, s{S_KP}, s{S_T1}")
    A(f"s_add_u32 s{S_JV}, s{S_VP}, s{S_T1}")
    A(f"s_add_u32 s{S_JTK}, s{S_KP}, {33*32768}")
    A(f"s_add_u32 s{S_JTV}, s{S_VP}, {33*32768}")
    A(f"s_mov_b32 s{S_REND}, {RING}")
    A(f"s_mul_i32 s{S_PX}, s{S_QB}, {28*1024}")
    def c1dma():
        flat(dmaW(f"s_add_u32 m0, s{G_WP}, 32768")); flat(dmaW(f"s_add_u32 m0, s{G_WP}, 49152"))
        flat(dmaA(f"s_add_u32 m0, s{G_AW}, 32768", 0)); flat(dmaA(f"s_add_u32 m0, s{G_AW}, 32768+4096", 1))
    if "u" in abl: c1dma()
    A("s_waitcnt vmcnt(32)" if "u" in abl else "s_waitcnt vmcnt(16)")
    X = (110, 120); SU = (130, 131); MU = (132, 133); VA = (134, 135); T = (136, 137)
    for row in range(2):
        for e in range(4):
            A(f"v_lshlrev_b32 v{X[row]+2*e}, 16, v{100+4*row+e}")
            A(f"v_and_b32 v{X[row]+2*e+1}, 0xffff0000, v{100+4*row+e}")
        A(f"v_add_f32 v{SU[row]}, v{X[row]}, v{X[row]+1}")
        for e in range(2, 8): A(f"v_add_f32 v{SU[row]}, v{SU[row]}, v{X[row]+e}")
    A("s_nop 1")
    dpp_sum2(A, SU[0], SU[1], S_T0, S_T1)
    if "U" in abl: c1dma()
    for row in range(2):
        A(f"v_mov_b32 v{MU[row]}, s{S_T0+row}")
        A(f"v_mul_f32 v{MU[row]}, 0x3b124925, v{MU[row]}")
        A(f"v_mov_b32 v{SU[row]}, 0")
    A(f"s_mov_b64 exec, s[{S_PA}:{S_PB}]")
    for e in range(8):
        for row in range(2):
            A(f"v_sub_f32 v{T[row]}, v{X[row]+e}, v{MU[row]}")
            A(f"v_fmac_f32 v{SU[row]}, v{T[row]}, v{T[row]}")
    A("s_mov_b64 exec, -1")
    A("s_nop 1")
    dpp_sum2(A, SU[0], SU[1], S_T0, S_T1)
    seq = ["v_mov_b32 v{VA}, s{S}", "v_mul_f32 v{VA}, 0x3b124925, v{VA}",
        "v_cvt_pk_bf16_f32 v{T}, v{MU}, v{VA}", "v_lshlrev_b32 v{MU}, 16, v{T}", "v_and_b32 v{VA}, 0xffff0000, v{T}",
        "v_add_f32 v{VA}, 0x3727c5ac, v{VA}", "v_cvt_pk_bf16_f32 v{T}, v{VA}, v{VA}", "v_lshlrev_b32 v{VA}, 16, v{T}",
        "v_sqrt_f32 v{VA}, v{VA}", "v_cvt_pk_bf16_f32 v{T}, v{VA}, v{VA}", "v_lshlrev_b32 v{VA}, 16, v{T}", "v_rcp_f32 v{VA}, v{VA}"]
    for s in seq:
        for row in range(2): A(s.format(VA=VA[row], MU=MU[row], T=T[row], S=S_T0+row))
    for row in range(2):
        x = X[row]
        for e in range(8): A(f"v_sub_f32 v{x+e}, v{x+e}, v{MU[row]}")
        for e in range(4):
            A(f"v_cvt_pk_bf16_f32 v{T[row]}, v{x+2*e}, v{x+2*e+1}")
            A(f"v_lshlrev_b32 v{x+2*e}, 16, v{T[row]}")
            A(f"v_and_b32 v{x+2*e+1}, 0xffff0000, v{T[row]}")
        for e in range(8): A(f"v_mul_f32 v{x+e}, v{x+e}, v{VA[row]}")
        for e in range(4): A(f"v_cvt_pk_bf16_f32 v{100+4*row+e}, v{x+2*e}, v{x+2*e+1}")
    if "u" not in abl and "U" not in abl: c1dma()
    A(f"s_lshl_b32 s{S_T0}, s2, 7")
    A(f"s_add_u32 s{S_T0}, s{S_T0}, {FLG_OFF}")
    A(f"s_lshl_b32 s{S_T1}, s{S_WAVE}, 5")
    A(f"s_add_u32 s{S_T1}, s{S_T1}, s2")
    A(f"s_cmp_lt_u32 s{S_T1}, 32")
    A(f"s_cselect_b32 s{S_T0}, s{S_T0}, {OOB}")
    for r in range(96, 100): A(f"v_mov_b32 v{r}, 0")
    A("s_mov_b64 exec, 0xff")
    A(f"buffer_store_dwordx4 v[96:99], v{V_L16}, s[{S_WS}:{S_WS+3}], s{S_T0} offen sc1")
    A("s_mov_b64 exec, -1")
    A(f"s_lshr_b32 s{S_T0}, s{LQ}, 5")
    A(f"s_mul_i32 s{S_T0}, s{S_T0}, {28*1024}")
    A(f"s_bfe_u32 s{S_T1}, s{LQ}, 0x10004")
    A(f"s_lshl_b32 s{S_T1}, s{S_T1}, 10")
    A(f"s_add_u32 s{S_T0}, s{S_T0}, s{S_T1}")
    A(f"s_and_b32 s{S_T1}, s{LQ}, 15")
    A(f"s_lshl_b32 s{S_T1}, s{S_T1}, 4")
    A(f"s_add_u32 s{S_T0}, s{S_T0}, s{S_T1}")
    A(f"v_lshrrev_b32 v28, 2, v{V_LANE}")
    A("v_lshlrev_b32 v28, 11, v28")
    A(f"v_and_b32 v29, 3, v{V_LANE}")
    A("v_lshl_add_u32 v28, v29, 8, v28")
    A(f"s_mov_b64 exec, s[{S_PA}:{S_PB}]")
    A(f"buffer_store_dwordx4 v[100:103], v28, s[{S_WS}:{S_WS+3}], s{S_T0} offen sc1")
    A(f"buffer_store_dwordx4 v[104:107], v28, s[{S_WS}:{S_WS+3}], s{S_T0} offen offset:16 sc1")
    A("s_mov_b64 exec, -1")
    A("s_waitcnt lgkmcnt(0)")
    srd(A, S_C, PT, 448*4096*2)
    A(f"s_lshl_b32 s{G_ST+1}, s{S_H}, 8")
    A(f"s_cmp_ge_u32 s{S_H}, 14")
    A(f"s_cselect_b32 s{G_ST+1}, {OOB}, s{G_ST+1}")
    A(f"s_mov_b32 s{G_ST+2}, s{S_PX}")
    A(f"s_sub_u32 s{S_T0}, s{S_I}, 14")
    A(f"s_cselect_b32 s{S_T0}, s{S_I}, s{S_T0}")
    A(f"s_lshl_b32 s{S_PQ}, s{S_T0}, 18")
    A(f"s_mul_i32 s{S_T1}, s{S_T0}, {32*3584}")
    A(f"s_add_u32 s{S_P1}, s{G_ST+1}, s{S_T1}")
    A(f"s_lshl_b32 s{S_T1}, s{S_T0}, 11")
    A(f"s_add_u32 s{S_PX}, s{S_PX}, s{S_T1}")
    A(f"s_mov_b32 s{S_CNT}, 0")
    A(f"s_mov_b32 s{G_CUR}, 0")
    A(f"s_mov_b32 s{G_DLT}, 32768")
    A(f"s_add_u32 s{G_TGT}, s{G_AW}, 65536")
    A(f"s_mov_b32 s{S_PA}, 0xffff0000")
    A(f"s_mov_b32 s{S_PB}, 32768")
    A(f"s_bfe_u32 s{S_T0}, s2, 0x20003")
    A(f"s_lshl_b32 s{S_X1}, 8, s{S_T0}")
    A(f"s_or_b32 s{S_X1}, s{S_X1}, {(1<<2)|(1<<9)|(1<<11)|(1<<13)|(1<<14)}")
    if "z" in abl:
        for r in range(28, 32): A(f"v_mov_b32 v{r}, 0")
        A("s_nop 1")
        for k in range(14): A(f"v_mfma_f32_32x32x16_bf16 {vr(32+16*k,16)}, v[28:31], v[28:31], 0")
        for k in range(2): A(f"v_mfma_f32_32x32x16_bf16 {ar(64+16*k,16)}, v[28:31], v[28:31], 0")
    A("s_waitcnt vmcnt(19)")
    A("s_barrier")
    stmp("Gpro")
    def WF(wb, ks): return (wb*2 + ks)*4
    def CF(par, ks): return 160 + par*8 + ks*4
    def g_wrd(wb):
        L = []
        for ks in range(2):
            for t in range(2):
                L.append(f"ds_read_b64_tr_b16 {ar(WF(wb,ks)+2*t,2)}, v{16+wb} offset:{(32*ks+4*t)*512} ;@w{wb}")
        return L
    def g_crd(cb): return [f"ds_read_b128 {ar(CF(cb&1,ks),4)}, v{14+ks} offset:{cb*2048} ;@c{cb}" for ks in range(2)]
    def p1_dma(slot):
        L = [[f"s_add_u32 m0, s{S_W4}, {slot}", "s_nop 0", f"buffer_load_dwordx4 v{V_DO}, s[{S_C}:{S_C+3}], s{S_PQ} offen lds"]]
        for j in range(1, 4): L.append([f"buffer_load_dwordx4 v{V_DO+j}, s[{S_C}:{S_C+3}], s{S_PQ} offen offset:{j*1024} lds"])
        L.append([f"s_add_u32 m0, s{S_W2K}, {slot}", f"s_add_u32 s{S_PQ}, s{S_PQ}, {32*8192}", f"buffer_load_dwordx4 v{V_DO+4}, s[{S_Dd}:{S_Dd+3}], s{S_P1} offen lds"])
        L.append([f"buffer_load_dwordx4 v{V_DO+5}, s[{S_Dd}:{S_Dd+3}], s{S_P1} offen offset:1024 lds"])
        L.append(["s_add_u32 m0, m0, 8192", f"s_add_u32 s{S_P1}, s{S_P1}, {32*3584}", f"buffer_load_dwordx4 v{V_L16}, s[{S_WS}:{S_WS+3}], s{S_PX} offen sc1 lds"])
        L.append([f"buffer_load_dwordx4 v{V_L16}, s[{S_WS}:{S_WS+3}], s{S_PX} offen offset:1024 sc1 lds", f"s_add_u32 s{S_PX}, s{S_PX}, 2048",
                  f"s_cmp_eq_u32 s{S_PQ}, {14*32*8192}", f"s_cselect_b32 s{S_PQ}, 0, s{S_PQ}", f"s_cselect_b32 s{S_P1}, s{G_ST+1}, s{S_P1}", f"s_cselect_b32 s{S_PX}, s{G_ST+2}, s{S_PX}"])
        return L
    def pslot(c): return ((c + 3) % 5)*32768
    p1_setup = wrow_voffs(V_DO, S_H, 28, 29, 30) + [
        f"v_lshrrev_b32 v28, 4, v{V_LANE}", f"s_lshl_b32 s{S_T0}, s{S_WAVE}, 3", f"v_add_u32 v29, s{S_T0}, v28", "v_mul_u32_u24 v29, 3584, v29",
        "v_lshlrev_b32 v28, 1, v28", f"v_and_b32 v30, 15, v{V_LANE}", "v_xor_b32 v28, v28, v30",
        f"s_lshl_b32 s{S_T0}, s{S_RR}, 3", f"v_xor_b32 v28, s{S_T0}, v28",
        f"v_lshl_add_u32 v{V_DO+4}, v28, 4, v29", f"v_add_u32 v{V_DO+5}, {4*3584 - 1024}, v{V_DO+4}"]
    p1_setup2 = [f"s_lshl_b32 s{S_T0}, s{S_RR}, 8", f"s_add_u32 s{S_T0}, s{S_T0}, {pslot(0)}"] + nat_bases(V_RB, f"s{S_T0}", 28, 29, 30, V_RK) + [
        f"v_sub_u32 v29, v29, v{V_RK}", f"s_lshl_b32 s{S_T0}, s{S_RR}, 8", f"v_subrev_u32 v29, s{S_T0}, v29", "v_add_u32 v29, 16384, v29",
        f"s_lshl_b32 s{S_T0}, s{S_RR}, 2", f"v_xor_b32 v28, s{S_T0}, v28"]
    for p in range(4): p1_setup2 += [f"v_xor_b32 v30, {p}, v28", f"v_lshl_add_u32 v{V_HT+p}, v30, 5, v29"]
    p1_setup2 += [f"s_lshl_b32 s{S_T0}, s{S_ROLE}, 12", f"s_add_u32 s{S_T0}, s{S_T0}, {24576 + pslot(0)}", f"v_add_u32 v{V_RX}, s{S_T0}, v{V_L16}"]
    bias_unpack = []
    for g in range(8):
        o = 4*(g >> 1) + 2*(g & 1)
        bias_unpack += [f"v_accvgpr_read_b32 v31, a{224+g}", "v_lshlrev_b32 v24, 16, v31", "v_and_b32 v31, 0xffff0000, v31"]
        for r4 in range(4): bias_unpack += [f"v_accvgpr_write_b32 a{96+16*r4+o}, v24", f"v_accvgpr_write_b32 a{96+16*r4+o+1}, v31"]
    def pair_reg(p): return 32 + 8*p if p < 28 else 48 + 8*(p - 28)
    def pair_cvt(p):
        T = pair_reg(p); L = []
        if p >= 28: L += [f"v_accvgpr_read_b32 v{T+e}, a{64+8*(p-28)+e}" for e in range(8)]
        return L + [f"v_cvt_pk_bf16_f32 v{T+e}, v{T+2*e}, v{T+2*e+1}" for e in range(4)]
    def pair_st(p):
        T = pair_reg(p)
        g = [f"buffer_store_dwordx4 v[{T}:{T+3}], v{V_L16}, s[{S_WS}:{S_WS+3}], s{G_ST} offen offset:{(p & 3)*1024} KVST ;@st"]
        if p & 3 == 3: g.append(f"s_add_u32 s{G_ST}, s{G_ST}, s{G_X1 if (p >> 2) % 2 == 0 else G_X2}")
        return g
    ool = []
    def emit_kv(ln):
        ln = ln.split(";@")[0].strip()
        if "KVST" in ln and "s" in abl: return
        if "KVST" in ln:
            k = len(ool)
            A(f"s_cbranch_vccnz L_{N}_wt{k}")
            A(ln.replace(" KVST", ""))
            A.label(f"L_{N}_wr{k}")
            ool.append(ln.replace("KVST", "sc1"))
        else: A(ln)
    def gchunk(isV, mode):
        lp = mode in ("loop", "first")
        M = []
        for cb in range(8):
            for wb in range(8):
                t = (cb >> 1)*16 + wb*2 + (cb & 1) if isV else cb*8 + wb
                for n_, ks in enumerate((0, 1) if wb % 2 == 0 else (1, 0)):
                    c = ar(CF(cb & 1, ks), 4); w = ar(WF(wb, ks), 4)
                    a, b = (c, w) if isV else (w, c)
                    M.append(f"{MF} {gacc(t)}, {a}, {b}, {'0' if (mode == 'first' and n_ == 0) else gacc(t)}")
        W = Weave(M)
        for cb in range(8):
            g0 = 16*cb
            W.pre[g0].append(f"WAITLDS c{cb}")
            if cb == 0:
                for wb in range(0, 8, 2): W.pre[2*wb].append(f"WAITLDS w{wb+1}")
            if cb == 1 and mode != "t15": W.pre[g0].append("s_barrier")
            if cb == 7 and mode != "t15":
                W.pre[g0] += ["s_waitcnt vmcnt(16)" if lp else "s_waitcnt vmcnt(8)", "s_barrier"]
                W.post[g0] += g_crd(0)
                for wb in range(8):
                    r = g_wrd(wb)
                    W.post[g0 + 2*wb + 1] += r[:2]
                    W.post[min(g0 + 2*wb + 2, 127)] += r[2:]
            if cb < 7: W.at(g_crd(cb + 1), [g0 + (8 if cb == 0 else 1), g0 + (10 if cb == 0 else 3)])
        if mode != "t15":
            W.spread([f"v_xor_b32 v{16+j}, 0x8000, v{16+j}" for j in range(8)], 70, 95)
            W.post[101].append(f"v_add_u32 v14, s{G_DLT}, v14")
            W.post[103].append(f"v_add_u32 v15, s{G_DLT}, v15")
            W.post[106] += [f"s_add_u32 s{G_TGT}, s{G_AW}, s{G_CUR}", f"s_add_u32 s{G_CUR}, s{G_CUR}, s{G_DLT}"]
            W.post[108] += [f"s_cmp_eq_u32 s{G_CUR}, 65536", f"s_cselect_b32 s{G_DLT}, s{S_PA}, s{S_PB}"]
        if lp:
            dl = dmaA(f"s_mov_b32 m0, s{G_TGT}", 0) + dmaW(f"s_mov_b32 m0, s{G_WP}") + dmaA(f"s_add_u32 m0, s{G_TGT}, 4096", 1) + dmaW(f"s_add_u32 m0, s{G_WP}, 16384")
            W.spread(dl, 5, 105)
            W.post[110] += [f"s_xor_b32 s{G_WP}, s{G_WP}, 0x8000", f"s_add_u32 s{S_CNT}, s{S_CNT}, 1"]
            W.post[127] += [f"s_bitcmp0_b32 s{S_X1}, s{S_CNT}"]
        if mode == "t14":
            W.spread(p1_setup, 2, 30)
            W.spread(p1_dma(pslot(0)), 34, 104)
            W.spread(bias_unpack, 30, 111)
            W.post[111] += [f"v_readfirstlane_b32 s{G_PURE}, v25"]
        if mode == "t15":
            W.spread(p1_dma(pslot(1)) + p1_dma(pslot(2)), 4, 116)
            W.post[1] += [f"s_bfe_u32 s{S_T1}, s{G_PURE}, 0xa0006", f"s_mul_i32 s{S_T1}, s{S_T1}, s{S_T1}"]
            W.post[2] += [f"s_lshr_b32 s{G_PURE}, s{G_PURE}, 16", f"s_lshl_b32 s{G_PURE}, s{G_PURE}, 5"]
            W.post[3] += [f"s_cmp_lg_u32 s{G_PURE}, s{S_T1}", "s_cselect_b64 vcc, -1, 0"]
            W.spread(p1_setup2, 4, 34)
            for a_ in range(3):
                W.spread([i for p in range(8*a_, 8*a_ + 8) for i in pair_cvt(p)], 32*a_ + 38, min(32*a_ + 66, 128))
            W.at([pair_st(p) for p in range(16)], [44 + 4*k for k in range(6)] + [69, 73] + [77 + 6*k for k in range(8)])
        if not isV: print('G', mode, 'excess', W.excess())
        return W.lines()
    pre = g_crd(0)
    for wb in range(8): pre += g_wrd(wb)
    pre, qg = resolve_lds(pre, [])
    flat(pre)
    A(f"s_cmp_eq_u32 s{G_ISV}, 0")
    A(f"s_cbranch_scc0 L_{N}_gV")
    for isV in (0, 1):
        tag = "V" if isV else "K"
        if isV: A.label(f"L_{N}_gV")
        l, q = resolve_lds(gchunk(isV, "first"), qg); assert q == qg, (q, qg)
        if "z" not in abl: flat(l)
        sv = sidx[0]
        stmp("gfirst")
        A(".p2align 3")
        A.label(f"L_{N}_loop{tag}")
        l, q = resolve_lds(gchunk(isV, "loop"), qg); assert q == qg
        if "1" in abl: l = [i for i in l if not i.startswith("buffer_load")]
        if "2" in abl: l = [i for i in l if not i.startswith("s_barrier")]
        if "3" in abl: l = [i for i in l if not i.startswith("ds_read_b64")]
        if "4" in abl: l = [i for i in l if not i.startswith("ds_read_b128")]
        if "5" in abl: l = [i for i in l if not (i.startswith("s_waitcnt") and "vmcnt" in i)]
        flat(l)
        A(f"s_cbranch_scc1 L_{N}_loop{tag}")
        A(f"s_cmp_lg_u32 s{S_CNT}, 14")
        A(f"s_cbranch_scc1 L_{N}_hook")
        for mode in ("t14", "t15"):
            stmp("g" + mode)
            if mode == "t15" and not isV and "G" in abl: sidx[0] = sv
            l, q = resolve_lds(gchunk(isV, mode), qg)
            for ln in l: emit_kv(ln)
            if mode == "t15": vmq0 = ["C0"]*8 + [("st" if "KVST" in x else "C") for x in l if x.startswith("buffer_")]
        A(f"s_branch L_{N}_gdone")
    A.label(f"L_{N}_hook")
    A(f"s_cmp_eq_u32 s{S_CNT}, 13")
    A(f"s_cbranch_scc1 L_{N}_hpf")
    A(f"s_cmp_lg_u32 s{S_CNT}, 2")
    A(f"s_cbranch_scc1 L_{N}_h1")
    A(f"v_lshrrev_b32 v28, 4, v{V_LANE}")
    A("v_lshlrev_b32 v28, 3, v28")
    A(f"s_lshl_b32 s{S_T0}, s{S_H}, 1")
    A(f"s_add_u32 s{S_T0}, s{S_T0}, s{S_RR}")
    A(f"s_lshl_b32 s{S_T0}, s{S_T0}, 7")
    for g in range(4): A(f"buffer_load_dwordx2 a[{224+2*g}:{224+2*g+1}], v28, s[{S_Dd}:{S_Dd+3}], s{S_T0} offen offset:{g*32}")
    A(f"s_branch L_{N}_hret")
    A.label(f"L_{N}_h1")
    A(f"s_cmp_lg_u32 s{S_WAVE}, 0")
    A(f"s_cbranch_scc1 L_{N}_hret")
    A(f"s_cmp_ge_u32 s{S_CNT}, 9")
    A(f"s_cbranch_scc1 L_{N}_h2")
    A(f"s_getreg_b32 s{S_T0}, hwreg(HW_REG_XCC_ID, 0, 4)")
    A(f"s_mul_i32 s{S_T1}, s{S_T0}, s{S_T0}")
    A(f"s_lshl_b32 s{S_T1}, s{S_T1}, 16")
    A(f"s_lshl_b32 s{S_T0}, s{S_T0}, 6")
    A(f"s_add_u32 s{S_T0}, s{S_T0}, s{S_T1}")
    A(f"s_add_u32 s{S_T0}, s{S_T0}, 1")
    A(f"s_and_b32 s{S_T1}, s2, 7")
    A(f"s_lshl_b32 s{S_T1}, s{S_T1}, 5")
    A(f"v_mov_b32 v28, s{S_T1}")
    A(f"v_mov_b32 v29, s{S_T0}")
    A("s_mov_b64 exec, 1")
    A("global_atomic_add v28, v29, s[100:101]")
    A("s_mov_b64 exec, -1")
    A(f"s_branch L_{N}_hret")
    A.label(f"L_{N}_h2")
    A(f"v_and_b32 v28, 7, v{V_LANE}")
    A("v_lshlrev_b32 v28, 5, v28")
    A(f"s_cmp_eq_u32 s{S_CNT}, 9")
    A(f"s_cbranch_scc0 L_{N}_h3")
    A("global_load_dword v24, v28, s[100:101] sc1")
    A(f"s_branch L_{N}_hret")
    A.label(f"L_{N}_h3")
    A("s_mov_b32 s3, 0")
    A("s_waitcnt vmcnt(32)")
    A.label(f"L_{N}_pl1")
    A("v_and_b32 v24, 63, v24")
    A("v_cmp_ne_u32 vcc, 32, v24")
    A("s_add_u32 s3, s3, 1")
    A(f"s_cbranch_vccz L_{N}_hret")
    A("s_cmp_ge_u32 s3, 0x400000")
    A(f"s_cbranch_scc1 L_{N}_hret")
    A("s_sleep 1")
    A("global_load_dword v24, v28, s[100:101] sc1")
    A("s_waitcnt vmcnt(0)")
    A(f"s_branch L_{N}_pl1")
    A.label(f"L_{N}_hpf")
    srd(A, S_Dd, PT+2, 448*1792*2)
    A(f"s_and_b32 s{S_T1}, s2, 7")
    A(f"s_lshl_b32 s{S_T1}, s{S_T1}, 5")
    A(f"v_mov_b32 v28, s{S_T1}")
    A("global_load_dword v25, v28, s[100:101] sc1")
    A.label(f"L_{N}_hret")
    A(f"s_cmp_eq_u32 s{G_ISV}, 0")
    A(f"s_cbranch_scc1 L_{N}_loopK")
    A(f"s_branch L_{N}_loopV")
    A.label(f"L_{N}_gdone")
    stmp("Gloop")
    D = 3; FA = 224
    def kv_dma(isV, slot):
        p, j, jt = (S_VP, S_JV, S_JTV) if isV else (S_KP, S_JK, S_JTK)
        L = [[f"s_add_u32 m0, s{S_KVO}, {slot}", "s_nop 0", f"buffer_load_dwordx4 v{V_L16}, s[{S_WS}:{S_WS+3}], s{p} offen sc1 lds"]]
        for k in range(1, 4): L.append([f"buffer_load_dwordx4 v{V_L16}, s[{S_WS}:{S_WS+3}], s{p} offen offset:{k*1024} sc1 lds"])
        L[3].append("s_add_u32 m0, m0, 4096")
        L.append([f"buffer_load_dwordx4 v{V_L16B}, s[{S_WS}:{S_WS+3}], s{p} offen sc1 lds"])
        for k in range(1, 4): L.append([f"buffer_load_dwordx4 v{V_L16B}, s[{S_WS}:{S_WS+3}], s{p} offen offset:{k*1024} sc1 lds"])
        L[7] += [f"s_add_u32 s{p}, s{p}, 32768", f"s_cmp_eq_u32 s{p}, s{j}", f"s_cselect_b32 s{p}, s{jt}, s{p}"]
        return L
    def pacc(j, r4):
        if j < 8: return ar((0 if r4 < 2 else 160 - 64) + 32*r4 + 4*j, 4)
        return ar(96 + 16*r4 + 4*(j - 8), 4)
    def xb(c, r4): return ar(240 + 4*r4, 4) if c % 2 == 0 else vr(32 + 4*r4, 4)
    def p1_rd(j):
        f = FA + 4*(j % 4)
        b, st = (V_RB + j, 2048) if j < 8 else (V_HT + j - 8, 1024)
        return [f"ds_read_b64_tr_b16 {ar(f,2)}, v{b} ;@f{j}"], [f"ds_read_b64_tr_b16 {ar(f+2,2)}, v{b} offset:{st} ;@f{j}"]
    def p1_xrd(c): return [f"ds_read_b128 {xb(c,r4)}, v{V_RX} offset:{r4*1024} ;@x" for r4 in range(4)]
    NSB = 3
    def tagd(L, tag): return [[(i + f" ;@{tag}" if i.startswith("buffer") else i) for i in g] for g in L]
    nC = 0
    for k_, t_ in enumerate(vmq0):
        if t_ == "C": vmq0[k_] = f"C{1 + nC//8}"; nC += 1
    lines = ["VMQ " + " ".join(t_ + "*1" for t_ in vmq0), "WAITVM C0", "s_barrier"] + p1_xrd(0) + [f"v_add_u32 v{V_L16B}, 4096, v{V_L16}"]
    for j in range(D):
        r0, r1 = p1_rd(j); lines += r0 + r1
    pend = tagd(p1_dma(pslot(3)), "C3")
    lines += fl(pend[:2]); pend = pend[2:]
    for c in range(14):
        last = c == 13
        M = []
        for j in range(12):
            for r4 in ((0, 1, 2, 3) if j % 2 == 0 else (3, 2, 1, 0)):
                ac = pacc(j, r4)
                M.append(f"{MF} {ac}, {ar(FA+4*(j%4),4)}, {xb(c,r4)}, {'0' if (c == 0 and j < 8) else ac}")
        W = Weave(M)
        for j in range(12):
            W.pre[4*j].append(f"WAITLDS f{j}")
            j2 = j + D
            if j2 == 12 and not last:
                W.post[4*j-2] += (["s_waitcnt vmcnt(0)", "VMQ"] if c == NSB else [f"WAITVM C{c+1}"]) + ["s_barrier"]
                if c == NSB: W.post[4*j-2].append("HOOK sig2")
                xr = p1_xrd(c + 1)
                W.post[4*j-1].append(xr[0]); W.post[4*j+1] += xr[1:3]; W.post[4*j+2].append(xr[3])
            if j2 < 12 or not last:
                r0, r1 = p1_rd(j2 % 12)
                W.post[4*j] += r0 + r1
        W.pre[0].append("WAITLDS x")
        if not last:
            dl = (pslot(c+1) - pslot(c)) & 0xffffffff
            W.post[3].append(f"v_add_u32 v{V_RX}, {dl:#x}, v{V_RX}")
            for p in range(8): W.post[max(4*(p-2)+3, 2*p+1) if p > 2 else 4*p + 7].append(f"v_add_u32 v{V_RB+p}, {dl:#x}, v{V_RB+p}")
            for p in range(4): W.post[4*(6+p)+3].append(f"v_add_u32 v{V_HT+p}, {dl:#x}, v{V_HT+p}")
        if pend: W.at(pend, [1, 5, 9, 13, 17, 21] if c == NSB else [2, 6, 13, 18, 25, 30]); pend = []
        if c + 4 <= 13:
            pend = tagd(p1_dma(pslot(c+4)), f"C{c+4}")
            W.at(pend[:2], [41, 46]); pend = pend[2:]
        if c == 11: W.at(kv_dma(False, 2*32768)[:2], [41, 45])
        if c == 12: W.spread(kv_dma(False, 2*32768)[2:] + kv_dma(False, 3*32768)[:6], 1, 48)
        if c == 13: W.spread(kv_dma(False, 3*32768)[6:] + kv_dma(True, 4*32768), 1, 44)
        ex = []
        if c == 0:
            for k_ in range(6): ex += [pair_st(16 + k_)] + (pair_cvt(24 + k_//2)[2*(k_%2):2*(k_%2)+2])
            ex = ex[1:3] + ex[:1] + ex[3:]
        if c == 1:
            ex += [pair_st(22)] + pair_cvt(27) + [pair_st(23)] + pair_cvt(28)[:6] + [pair_st(24)] + pair_cvt(28)[6:] + [pair_st(25)] + pair_cvt(29)[:6] + [pair_st(26)] + pair_cvt(29)[6:]
        if c == 2:
            ex += [pair_st(27)] + pair_cvt(30)[:6] + [pair_st(28)] + pair_cvt(30)[6:] + [pair_st(29)] + pair_cvt(31)[:6] + [pair_st(30)] + pair_cvt(31)[6:] + [pair_st(31)]
        if ex: W.pack(ex, 4 if c == 0 else 0, 48)
        print('P1 body', c, 'excess', W.excess(), 'total', sum(W.load(g) for g in range(48)))
        lines += W.lines()
        if c in (0, 2, 3, 5, 7, 9, 11): lines.append(f"STAMP b{c}")
        if c == 9: lines.append("HOOK ld2")
        if c == 10: lines.append("HOOK poll2")
    lines, _ = resolve_lds(lines, [])
    q = []; out = []
    for ln in lines:
        if ln.startswith("VMQ"):
            q = []
            for tk in ln.split()[1:]:
                t, n_ = tk.split("*"); q += [t]*int(n_)
            continue
        if ln.startswith("WAITVM"):
            tag = ln.split()[1]
            idx = max((i for i, t in enumerate(q) if t == tag), default=-1)
            if idx >= 0:
                n_ = len(q) - idx - 1; q = q[idx+1:]; out.append(f"s_waitcnt vmcnt({n_})")
            continue
        if ln.startswith(("buffer_", "global_")):
            q.append(ln.split(";@")[1].strip() if ";@" in ln else None); ln = ln.split(";@")[0].strip()
            assert len(q) < 60
        out.append(ln)
    fld2 = f"buffer_load_dword v{V_T4}, v{V_T3}, s[{S_WS}:{S_WS+3}], s{S_T2} offen sc1"
    for ln in out:
        if ln.startswith("STAMP"): stmp(ln.split()[1])
        elif "d" in abl and ln.startswith("buffer_load") and "lds" in ln: pass
        elif "r" in abl and ln.startswith("ds_read"): pass
        elif "KVST" in ln: emit_kv(ln)
        elif ln.startswith("HOOK"):
            hk = ln.split()[1]; lab = f"L_{N}_{hk}"
            A(f"s_cmp_lg_u32 s{S_WAVE}, 0")
            A(f"s_cbranch_scc1 {lab}")
            if hk == "sig2":
                A(f"v_mov_b32 v{V_T3}, 0"); A(f"v_mov_b32 v{V_T4}, 1")
                A("s_mov_b64 exec, 1")
                A(f"buffer_atomic_add v{V_T4}, v{V_T3}, s[{S_WS}:{S_WS+3}], s{G_HF} offen")
                A("s_mov_b64 exec, -1")
            elif hk == "ld2":
                A(f"s_lshl_b32 s{S_T2}, s{S_H}, 7"); A(f"s_add_u32 s{S_T2}, s{S_T2}, {FLG_OFF}")
                A(fld2)
            else:
                spin(f"L_{N}_pl2", fld2, V_T4, 16, 6)
            A.label(lab)
        else: A(ln)
    stmp("P1")
    def nxt(d, s): return [f"s_add_u32 s{d}, s{s}, 32768", f"s_cmp_eq_u32 s{d}, s{S_REND}", f"s_cselect_b32 s{d}, 0, s{d}"]
    A("s_barrier")
    A(f"s_mov_b32 s{S_T0}, {f32(math.log2(math.e)/16.0)}")
    A(f"s_mov_b32 s{S_T1}, s{S_T0}")
    A(f"s_lshl_b32 s{S_T2}, s{S_RR}, 14")
    A(f"v_add_u32 v{V_T3}, s{S_T2}, v{V_L16}")
    A(f"s_lshl_b32 s{S_CNT}, s{S_ROLE}, 15")
    A(f"s_sub_u32 s{S_T2}, 32768, s{S_CNT}")
    A(f"s_lshl_b32 s{S_CNT}, s{S_RR}, 12")
    A(f"s_add_u32 s{S_T2}, s{S_T2}, s{S_CNT}")
    A(f"v_add_u32 v{V_T4}, s{S_T2}, v{V_L16}")
    for r in range(16): A(f"v_mov_b32 v{NM+r}, 0")
    def mzero(reg): A(f"v_mfma_f32_32x32x16_bf16 {reg}, {vr(NM,4)}, {vr(NM,4)}, 0")
    for k in range(16):
        src = (8*k if k < 8 else 160 + 8*(k - 8)); b = S + 8*(k % 4); t = F + 4*(k % 4)
        if 1 <= k < 9: mzero(vr(OL + 16*(k-1), 16))
        if k in (9, 10): mzero(ar(224 + 16*(k-9), 16))
        if k in (11, 13, 15): mzero(ar(160 + 8*(k-11), 16))
        for e in range(8): A(f"v_accvgpr_read_b32 v{b+e}, a{src+e}")
        for e in range(4): A(f"v_pk_mul_f32 v[{b+2*e}:{b+2*e+1}], v[{b+2*e}:{b+2*e+1}], s[{S_T0}:{S_T1}]")
        for e in range(4): A(f"v_cvt_pk_bf16_f32 v{t+e}, v{b+2*e}, v{b+2*e+1}")
        A(f"ds_write_b128 v{V_T4}, {vr(t,4)} offset:{(k >> 2)*8192 + (k & 3)*1024}")
    A(f"s_lshl_b32 s{S_T2}, s2, 15")
    A(f"s_add_u32 s{S_T2}, s{S_T2}, s{S_KVO}")
    A(f"s_add_u32 s{S_PX}, s{S_T2}, {HST_OFF}")
    A(f"s_mul_i32 s{S_T2}, s{S_RR}, {8192 - 2048}")
    A(f"s_sub_u32 s{S_PQ}, s{S_PX}, s{S_T2}")
    def hpart(k):
        b = S + 8*(k % 4); t = F + 16 + 4*(k % 4)
        for e in range(8): A(f"v_accvgpr_read_b32 v{b+e}, a{96+8*k+e}")
        for e in range(8): A(f"v_max_f32 v{b+e}, 0, v{b+e}")
        for e in range(4): A(f"v_pk_mul_f32 v[{b+2*e}:{b+2*e+1}], v[{b+2*e}:{b+2*e+1}], v[{b+2*e}:{b+2*e+1}]")
        for e in range(4): A(f"v_cvt_pk_bf16_f32 v{t+e}, v{b+2*e}, v{b+2*e+1}")
        A(f"buffer_store_dwordx4 {vr(t,4)}, v{V_L16}, s[{S_WS}:{S_WS+3}], s{S_PQ} offen offset:{(k%2)*1024}")
        if k % 2: A(f"s_add_u32 s{S_PQ}, s{S_PQ}, 4096")
    for k in range(4): hpart(k)
    A("s_waitcnt lgkmcnt(0)")
    A("s_barrier")
    for k in range(16): A(f"ds_read_b128 {ar(QS+4*k,4)}, v{V_T3} offset:{k*1024}")
    for k in range(16): A(f"ds_read_b128 {ar(QL+4*k,4)}, v{V_T3} offset:{32768 + k*1024}")
    mzero(ar(208, 16))
    for k in range(4, 8):
        hpart(k)
        if k % 2: mzero(ar(128 + 8*(k-5), 16))
    for r in [V_NM0, V_NM0+1] + list(range(V_LS, V_LS+16)): A(f"v_mov_b32 v{r}, 0")
    for r in range(4): A(f"v_mov_b32 v{ONES+r}, 0x3f803f80")
    A(f"s_lshl_b32 s{S_T0}, s{S_ROLE}, 14")
    A(f"v_add_u32 v{V_L16R}, s{S_T0}, v{V_L16}")
    A(f"v_lshrrev_b32 v{V_T0}, 4, v{V_LANE}")
    A(f"v_lshlrev_b32 v{V_T0}, 2, v{V_T0}")
    A(f"v_and_b32 v{V_THR}, 15, v{V_LANE}")
    A(f"v_sub_u32 v{V_THR}, v{V_THR}, v{V_T0}")
    A(f"s_add_u32 s{S_D}, s{S_QB}, 1")
    A("s_waitcnt lgkmcnt(0)")
    stmp("P2")
    def frd(m16): return f"ds_read_b128 {vr(F + 4*(m16 % 8), 4)}, v{V_RD} offset:{m16*1024} ;@f{m16}"
    S_RO = S_DEL
    def bar_open(a, b, rd):
        L = ["s_waitcnt vmcnt(16)", "s_barrier" if "8" not in abl else "s_nop 0"]
        if rd == "dyn": L += [f"s_add_u32 s{S_T0}, s{a}, s{S_RO}", f"v_add_u32 v{V_RD}, s{S_T0}, v{V_L16}"]
        else: L += [f"v_add_u32 v{V_RD}, s{a}, v{V_L16R if rd == 'own' else V_L16}"]
        return L
    def kvl(isV, jump, dma=True):
        p, j, jt = (S_VP, S_JV, S_JTV) if isV else (S_KP, S_JK, S_JTK)
        H = [[f"buffer_load_dwordx4 v{V_L16}, s[{S_WS}:{S_WS+3}], s{p} offen offset:{k*1024} sc1 lds"] for k in range(4)]
        T = [[f"buffer_load_dwordx4 v{V_L16B}, s[{S_WS}:{S_WS+3}], s{p} offen offset:{k*1024} sc1 lds"] for k in range(4)]
        if not dma: H = [[] for _ in H]; T = [[] for _ in T]
        adv = [f"s_add_u32 s{p}, s{p}, 32768"] if dma else []
        if jump: adv += [f"s_cmp_eq_u32 s{p}, s{j}", f"s_cselect_b32 s{p}, s{jt}, s{p}"]
        return H, T + [adv]
    def half(M, a, b, tail, head, fill, rd="own", last=False):
        W = Weave(M)
        if tail: W.post[0].append("s_add_u32 m0, m0, 4096")
        if not last:
            n_ = nxt(S_T2, b)
            W.post[4].append(n_[0]); W.post[8].append(n_[1]); W.post[11].append(n_[2])
            W.post[17] += ["s_waitcnt vmcnt(16)", "s_barrier" if "8" not in abl else "s_nop 0"]
            if rd == "dyn": W.post[19] += [f"s_add_u32 s{S_T0}, s{S_T2}, s{S_RO}", f"v_add_u32 v{V_RD}, s{S_T0}, v{V_L16}"]
            else: W.post[19] += [f"v_add_u32 v{V_RD}, s{S_T2}, v{V_L16R if rd == 'own' else V_L16}"]
            W.post[16].append(f"s_add_u32 m0, s{S_KVO}, s{a}")
            W.post[20].append(f"s_mov_b32 s{a}, s{S_T2}")
        for pr in range(8):
            g0 = 4*pr
            if pr % 2 == 0: W.pre[g0].append(f"WAITLDS f{2*pr+3}")
            m2 = 2*pr + 8
            if m2 < 16 or not last:
                W.post[g0+3].append(frd(m2 % 16))
                W.post[min(g0+4, len(M)-1)].append(frd((m2 + 1) % 16))
        if tail: W.at(tail, [2, 6, 10, 14, 24])
        if head: W.at(head, [18, 22, 26, 30])
        fill(W)
        return W
    def qk(q):
        M = []
        for pr in range(8):
            m = 2*pr; u, d = m // 8, m % 8
            v0 = pr % 2
            for (mm, v) in ((m, v0), (m+1, v0), (m+1, 1-v0), (m, 1-v0)):
                ac = vr(S + 8*v + 4*u, 4)
                first = d == 0 and ((v == v0 and mm == m) or (v != v0 and mm == m+1))
                M.append(f"{MF} {ac}, {vr(F+4*(mm%8),4)}, {ar(q + 4*(8*v + mm % 8), 4)}, {vr(NM + 8*v + 4*u, 4) if first else ac}")
        return M
    def oreg(o, b, v): return vr(OL + 64*v + 4*b, 4) if o == "L" else ar(OS + 64*v + 4*b, 4)
    def pv(o):
        M = []
        for m in range(16):
            for v in ((0, 1) if m % 2 == 0 else (1, 0)):
                M.append(f"{MF} {oreg(o,m,v)}, {vr(F+4*(m%8),4)}, {vr(P+4*v,4)}, {oreg(o,m,v)}")
        l = V_LL if o == "L" else V_LS
        for v in range(2): M.append(f"{MF} {vr(l+4*v,4)}, {vr(ONES,4)}, {vr(P+4*v,4)}, {vr(l+4*v,4)}")
        return M
    def cvts():
        return [f"v_cvt_pk_bf16_f32 v{P+4*v+2*u+k}, v{E+8*v+4*u+2*k}, v{E+8*v+4*u+2*k+1}" for u in range(2) for v in range(2) for k in range(2)]
    def exps(u): return [f"v_exp_f32 v{E+8*v+4*u+r}, v{S+8*v+4*u+r}" for v in range(2) for r in range(4)]
    def allmax():
        o = [S, S+1, S+2, S+3, S+8, S+9, S+10, S+11, S+4, S+5, S+6, S+7, S+12, S+13, S+14, S+15]
        L = [f"v_max3_f32 v{V_T0}, v{o[0]}, v{o[1]}, v{o[2]}"]
        for k in range(3, 15, 2): L.append(f"v_max3_f32 v{V_T0}, v{V_T0}, v{o[k]}, v{o[k+1]}")
        L.append(f"v_max_f32 v{V_T0}, v{V_T0}, v{o[15]}")
        return L
    def f_sum(l):
        def f(W):
            W.at(cvts(), [1, 1, 5, 5, 9, 9, 13, 13])
            W.at(exps(0)[:5], [21, 25, 27, 28, 29])
        return f
    def f_exp(W):
        am = allmax()
        W.at(exps(0)[5:], [1, 3, 5])
        W.at(exps(1), [9, 12, 13, 21, 25, 27, 28, 29])
        W.at(am, [0, 2, 6, 10, 14, 18, 22, 26])
        W.post[31].append(f"v_cmp_lt_f32 vcc, {THR}, v{V_T0}")
    pm_n = [0]
    def premask():
        lab = f"L_{N}_pm{pm_n[0]}"; pm_n[0] += 1
        A(f"s_sub_i32 s{S_D}, s{S_D}, 1")
        A(f"s_cmp_le_i32 s{S_D}, 0")
        A(f"s_cbranch_scc0 {lab}")
        A(f"s_lshl_b32 s{S_T0}, s{S_D}, 5")
        A(f"v_add_u32 v{V_T1}, s{S_T0}, v{V_THR}")
        A(f"v_mov_b32 v{V_T2}, {NEG}")
        A("s_nop 3")
        prs = (60, 62, 96, 98)
        for v in range(2):
            for u in range(2):
                for r in range(4): A(f"v_cmp_gt_i32 s[{prs[r]}:{prs[r]+1}], {16*(u-v) + r}, v{V_T1}")
                for r in range(4): A(f"v_cndmask_b32 v{NM+8*v+4*u+r}, v{NM+8*v+4*u+r}, v{V_T2}, s[{prs[r]}:{prs[r]+1}]")
        A("s_nop 1")
        A.label(lab)
    HK, TK = kvl(False, True); HV, TV = kvl(True, True)
    A(f"s_mov_b32 s{S_PA}, 0")
    A(f"s_mov_b32 s{S_PB}, 32768")
    pre = [f"s_add_u32 m0, s{S_KVO}, s{S_PA}"] + nxt(S_PA, S_PB) + bar_open(S_PA, S_PB, "own")
    for m in range(8): pre.append(frd(m))
    for g in HK: pre += g
    pre, qa = resolve_lds(pre, [])
    flat(pre)
    def emit(lines):
        l2, q = resolve_lds(lines, qa)
        flat(l2)
        return q
    def chk(slow, ret):
        if not (set(abl) & set("67890")): A(f"s_cbranch_vccnz {slow}")
        A.label(ret)
    def hot(lab, q, o, l, slow, ret, shared):
        rd = "x" if shared else "own"
        hk, tk = kvl(False, False, not shared); hv, tv = kvl(True, False, not shared)
        h1 = half(qk(q), S_PA, S_PB, tv, hk, f_sum(l), rd).lines()
        h2 = half(pv(o), S_PB, S_PA, tk, hv, f_exp, rd).lines()
        l1, qq = resolve_lds(h1, qa); assert qq == qa, (qq, qa)
        l2, qq = resolve_lds(h2, qa); assert qq == qa
        assert l1[0].startswith("s_waitcnt") and l1[1].startswith("v_mfma")
        def flt(L):
            if "6" in abl: L = [i for i in L if not i.startswith("buffer_load")]
            if "7" in abl: L = [i for i in L if not i.startswith(("v_exp", "v_cvt", "v_max"))]
            if "8" in abl: L = [i for i in L if not i.startswith("s_barrier")]
            if "9" in abl: L = [i for i in L if not i.startswith("ds_read")]
            if "0" in abl: L = [i for i in L if not (i.startswith("s_waitcnt") and "vmcnt" in i)]
            return L
        l1 = flt(l1); l2 = flt(l2)
        flat(l1[:2])
        A(".p2align 3")
        A.label(lab)
        flat(l1[2:]); flat(l2)
        chk(slow, ret)
        A(f"s_sub_u32 s{S_CNT}, s{S_CNT}, 1")
        flat(l1[:2])
        A(f"s_cbranch_scc0 {lab}")
    def cold(q, o, l, slow, ret, rd1, rd2, resetnm=False):
        if resetnm:
            for r in range(16): A(f"v_mov_b32 v{NM+r}, 0")
            A(f"v_mov_b32 v{V_NM0}, 0"); A(f"v_mov_b32 v{V_NM0+1}, 0")
            A(f"s_sub_u32 s{S_D}, s{S_QBL}, 32")
        premask()
        emit(half(qk(q), S_PA, S_PB, TV, HK, f_sum(l), rd1).lines())
        emit(half(pv(o), S_PB, S_PA, TK, HV, f_exp, rd2).lines())
        if slow is not None: chk(slow, ret)
    def slowpath(lab, rets, o, l, first):
        for k, (e, r) in enumerate(rets):
            A.label(e)
            A(f"s_mov_b32 s{S_T1}, {k}")
            if k + 1 < len(rets): A(f"s_branch {lab}")
        A.label(lab)
        for i in max_tree(): A(i)
        groupop(A, (V_MX, V_MX+1), (V_T0, V_T1), "v_max_f32")
        if not first:
            for v in range(2): A(f"v_max_f32 v{V_MX+v}, 0, v{V_MX+v}")
            for v in range(2): A(f"v_exp_f32 v{V_F0+v}, -v{V_MX+v}")
            A("s_nop 0")
            for v in range(2): A(f"v_mul_f32 v{l+4*v}, v{l+4*v}, v{V_F0+v}")
            if o == "L":
                for r in range(128): A(f"v_mul_f32 v{OL+r}, v{OL+r}, v{V_F0 + r//64}")
            else:
                for r in range(0, 128, 4):
                    for e in range(4): A(f"v_accvgpr_read_b32 v{E+e}, a{OS+r+e}")
                    for e in range(4): A(f"v_mul_f32 v{E+e}, v{E+e}, v{V_F0 + r//64}")
                    for e in range(4): A(f"v_accvgpr_write_b32 a{OS+r+e}, v{E+e}")
        for r in range(16):
            A(f"v_sub_f32 v{S+r}, v{S+r}, v{V_MX + r//8}")
            A(f"v_sub_f32 v{NM+r}, v{NM+r}, v{V_MX + r//8}")
            A(f"v_exp_f32 v{E+r}, v{S+r}")
        for v in range(2): A(f"v_sub_f32 v{V_NM0+v}, v{V_NM0+v}, v{V_MX+v}")
        for k, (e, r) in enumerate(rets[:-1]):
            A(f"s_cmp_eq_u32 s{S_T1}, {k}")
            A(f"s_cbranch_scc1 {r}")
        A(f"s_branch {rets[-1][1]}")
    zer = [f"v_accvgpr_write_b32 a{OS+r}, 0" for r in range(48, 128)]
    premask()
    A(f"s_cmp_eq_u32 s{S_ROLE}, 0")
    A(f"s_cbranch_scc0 L_{N}_Ystart")
    emit(half(qk(QL), S_PB, S_PA, TK, HV, lambda W: None).lines())
    A(f"s_mov_b32 s{S_CNT}, 32")
    A("s_nop 7")
    A(f"s_branch L_{N}_eFB")
    A.label(f"L_{N}_Ystart")
    emit(half(qk(QS), S_PB, S_PA, TK, HV, lambda W: None).lines())
    A("s_nop 7")
    A(f"s_branch L_{N}_eFA")
    A.label(f"L_{N}_segA")
    A(f"s_cmp_eq_u32 s{S_I}, 0")
    A(f"s_cbranch_scc1 L_{N}_coldA2")
    if "y" not in abl:
        srd(A, S_A, PT+4, 4096*448*2)
        srd(A, S_Bw, PT+6, 1792*448*2)
        A(f"s_lshl_b32 s{S_T0}, s{S_H}, 4")
        A(f"s_add_u32 s{S_T0}, s{S_T0}, s{S_I}")
        A(f"s_lshl_b32 s{S_T0}, s{S_T0}, 1")
        A(f"s_add_u32 s{S_T0}, s{S_T0}, s{S_RR}")
        A(f"s_mul_i32 s{S_PQ}, s{S_T0}, 7168")
        A(f"s_lshr_b32 s{S_P1}, s{S_PQ}, 1")
        A(f"v_lshlrev_b32 v126, 7, v{V_LANE}")
        A(f"v_min_u32 v125, 7040, v126")
        A(f"v_min_u32 v126, 3456, v126")
        A(f"buffer_load_dword v127, v125, s[{S_A}:{S_A+3}], s{S_PQ} offen")
        A(f"buffer_load_dword v127, v126, s[{S_Bw}:{S_Bw+3}], s{S_P1} offen")
    A(f"s_lshl_b32 s{S_CNT}, s{S_I}, 1")
    A(f"s_cmp_eq_u32 s{S_I}, 0")
    A(f"s_cbranch_scc1 L_{N}_coldA2")
    A(f"s_sub_u32 s{S_CNT}, s{S_CNT}, 1")
    A(f"s_sub_i32 s{S_D}, s{S_D}, s{S_CNT}")
    A(f"s_sub_u32 s{S_CNT}, s{S_CNT}, 1")
    hot(f"L_{N}_hotA", QS, "S", V_LS, f"L_{N}_eA0", f"L_{N}_rA0", True)
    A(f"s_mov_b32 s{S_RO}, 0")
    A(f"s_mov_b32 s{S_KP}, s{S_JTK}")
    A(f"s_sub_u32 s{S_VP}, s{S_JV}, 65536")
    A(f"s_branch L_{N}_coldA")
    A.label(f"L_{N}_coldA2")
    A(f"s_mov_b32 s{S_RO}, 16384")
    A.label(f"L_{N}_coldA")
    cold(QS, "S", V_LS, f"L_{N}_eA1", f"L_{N}_rA1", "x", "dyn")
    A(f"s_cmp_eq_u32 s{S_RO}, 0")
    A(f"s_cbranch_scc1 L_{N}_coldA2")
    cold(QL, "S", V_LS, None, None, "x", "own", resetnm=True)
    A(f"s_lshl_b32 s{S_T0}, s{S_I}, 1")
    A(f"s_sub_u32 s{S_CNT}, 30, s{S_T0}")
    A(f"s_branch L_{N}_eFB")
    for k, ln in enumerate(ool):
        A.label(f"L_{N}_wt{k}")
        A(ln)
        A(f"s_branch L_{N}_wr{k}")
    slowpath(f"L_{N}_spA", [(f"L_{N}_eA0", f"L_{N}_rA0"), (f"L_{N}_eA1", f"L_{N}_rA1")], "S", V_LS, False)
    slowpath(f"L_{N}_spB", [(f"L_{N}_eB0", f"L_{N}_rB0"), (f"L_{N}_eB1", f"L_{N}_rB1")], "L", V_LL, False)
    slowpath(f"L_{N}_spF", [(f"L_{N}_eFA", f"L_{N}_segA"), (f"L_{N}_eFB", f"L_{N}_segB")], None, None, True)
    hl = [f"buffer_load_dwordx4 {ar(4*k,4)}, v{V_L16 if k < 4 else V_L16B}, s[{S_WS}:{S_WS+3}], s{S_PX} offen offset:{(k%4)*1024} sc1" for k in range(8)]
    A.label(f"L_{N}_segB0")
    flat(hl)
    A(f"s_branch L_{N}_tail")
    A.label(f"L_{N}_segB")
    A(f"s_cmp_eq_u32 s{S_CNT}, 0")
    A(f"s_cbranch_scc1 L_{N}_segB0")
    A(f"s_cmp_eq_u32 s{S_CNT}, 2")
    A(f"s_cbranch_scc1 L_{N}_coldB0")
    A(f"s_sub_u32 s{S_CNT}, s{S_CNT}, 2")
    A(f"s_sub_i32 s{S_D}, s{S_D}, s{S_CNT}")
    A(f"s_sub_u32 s{S_CNT}, s{S_CNT}, 1")
    stmp("l_pre")
    hot(f"L_{N}_hotB", QL, "L", V_LL, f"L_{N}_eB0", f"L_{N}_rB0", False)
    A.label(f"L_{N}_coldB0")
    stmp("l_hot")
    A(f"s_mov_b32 s{S_CNT}, 1")
    flat(hl)
    A.label(f"L_{N}_coldB")
    cold(QL, "L", V_LL, f"L_{N}_eB1", f"L_{N}_rB1", "own", "own")
    A(f"s_sub_u32 s{S_CNT}, s{S_CNT}, 1")
    A(f"s_cbranch_scc0 L_{N}_coldB")
    A.label(f"L_{N}_tail")
    stmp("l_cold")
    flat(cvts())
    A("s_nop 1")
    flat(pv("L")[32:])
    A(f"v_lshrrev_b32 v{V_T0}, 3, v{V_LANE}")
    A(f"v_and_b32 v{V_T1}, 6, v{V_T0}")
    A(f"v_mul_u32_u24 v{V_T0}, 896, v{V_T0}")
    A(f"v_and_b32 v{V_T2}, 7, v{V_LANE}")
    A(f"v_xor_b32 v{V_T1}, v{V_T1}, v{V_T2}")
    A(f"v_lshl_add_u32 v{V_DO5}, v{V_T1}, 4, v{V_T0}")
    for c in range(1, 4): A(f"v_add_u32 v{V_DO5+c}, {c*(7168-1024)}, v{V_DO5}")
    srd(A, S_A, PT+4, 4096*448*2)
    srd(A, S_Bw, PT+6, 1792*448*2)
    A(f"s_lshl_b32 s{S_T0}, s{S_H}, 8")
    A(f"s_lshl_b32 s{S_T1}, s{S_WAVE}, 6")
    A(f"s_add_u32 s{S_T0}, s{S_T0}, s{S_T1}")
    A(f"s_mul_i32 s{S_JTK}, s{S_T0}, 896")
    A(f"s_lshr_b32 s{S_JTV}, s{S_JTK}, 1")
    A(f"s_mul_i32 s{S_D}, s{S_I}, 37")
    A(f"s_lshr_b32 s{S_D}, s{S_D}, 8")
    A(f"s_mul_i32 s{S_D}, s{S_D}, 7")
    A(f"s_sub_u32 s{S_D}, s{S_I}, s{S_D}")
    A(f"s_lshl_b32 s{S_T1}, s{S_D}, 7")
    A(f"s_add_u32 s{S_PQ}, s{S_JTK}, s{S_T1}")
    A(f"s_add_u32 s{S_P1}, s{S_JTV}, s{S_T1}")
    A(f"s_add_u32 s{S_QBL}, s{S_JTV}, 896")
    A(f"s_add_u32 s{S_W2K}, s{S_W4}, 32768")
    def o_dma(slot):
        L = []
        for c in range(12):
            g = []
            if c == 0: g += [f"s_add_u32 m0, s{S_KVO}, {slot}", "s_nop 0"]
            if c == 4: g += ["s_add_u32 m0, m0, 4096", f"s_add_u32 s{S_DEL}, s{S_PQ}, {4*7168}"]
            if c == 8: g += [f"s_add_u32 m0, s{S_W2K}, {slot}", f"s_add_u32 s{S_PQ}, s{S_PQ}, 128"]
            sd, so = (S_A, S_PQ if c < 4 else S_DEL) if c < 8 else (S_Bw, S_P1)
            g.append(f"buffer_load_dwordx4 v{V_DO5+(c%4)}, s[{sd}:{sd+3}], s{so} offen offset:{(c%4)*1024} lds")
            if c == 11: g += [f"s_add_u32 s{S_P1}, s{S_P1}, 128", f"s_cmp_eq_u32 s{S_P1}, s{S_QBL}", f"s_cselect_b32 s{S_P1}, s{S_JTV}, s{S_P1}", f"s_cselect_b32 s{S_PQ}, s{S_JTK}, s{S_PQ}"]
            L.append(g)
        return L
    ML = NM
    A(f"s_lshl_b32 s{S_T0}, s{S_WAVE}, 10")
    A(f"s_add_u32 s{S_T0}, s{S_T0}, 49152")
    A(f"v_add_u32 v{V_T3}, s{S_T0}, v{V_L16}")
    A(f"v_xor_b32 v{V_T4}, 2048, v{V_T3}")
    A(f"v_mov_b32 v{ML}, v{V_NM0}"); A(f"v_mov_b32 v{ML+1}, v{V_NM0+1}"); A(f"v_mov_b32 v{ML+2}, v{V_LL}"); A(f"v_mov_b32 v{ML+3}, v{V_LL+4}")
    A("s_waitcnt vmcnt(0) lgkmcnt(0)")
    A("s_barrier")
    stmp("l_tbar")
    A(f"ds_write_b128 v{V_T3}, {vr(ML,4)}")
    A(f"v_add_u32 v{V_RD}, {3*32768}, v{V_L16R}")
    pre = [frd(m) for m in range(8)]
    pre, qt = resolve_lds(pre, [])
    flat(pre)
    def tailfill(W):
        W.spread(o_dma("0"), 0, 32)
        W.post[18] += ["s_barrier", f"ds_read_b128 {vr(ML+4,4)}, v{V_T4} ;@ml"]
    l2, _ = resolve_lds(half(pv("L")[:32], None, None, None, None, tailfill, last=True).lines() + ["WAITLDS ml"], qt)
    flat(l2)
    stmp("attn")
    A("s_barrier")
    A(f"s_lshl_b32 s{S_T0}, s{S_RR}, 15")
    A(f"s_add_u32 s{S_T0}, s{S_T0}, 49152")
    A(f"v_add_u32 v{V_RD}, s{S_T0}, v{V_L16}")
    A(f"s_mul_i32 s{S_T0}, s{S_RR}, {80*1024}")
    A(f"s_add_u32 s{S_T0}, s{S_T0}, 65536")
    A(f"v_add_u32 v{V_THR}, s{S_T0}, v{V_L16}")
    od1 = o_dma("98304")
    def xaddr(k): return f"v{V_RD if k < 16 else V_THR} offset:{(k % 16)*1024}"
    FA_ = ML + 8
    A(f"s_cmp_eq_u32 s{S_ROLE}, 0")
    A(f"s_cbranch_scc1 L_{N}_cX")
    for k in range(32): A(f"ds_write_b128 {xaddr(k).split()[0]}, {vr(OL+4*k, 4)} {xaddr(k).split()[1]}")
    for v in range(2): A(f"v_rcp_f32 v{FA_+2*v}, v{V_LS+4*v}")
    A("s_waitcnt lgkmcnt(0)")
    A("s_barrier")
    for v in range(2): A(f"v_mov_b32 v{FA_+2*v+1}, v{FA_+2*v}")
    for k in range(32):
        T = F + 4*(k % 4); fa = FA_ + 2*(k // 16)
        if k % 2 == 0 and k < 24: flat(od1[k//2])
        for e in range(4): A(f"v_accvgpr_read_b32 v{T+e}, a{OS+4*k+e}")
        for e in range(2): A(f"v_pk_mul_f32 v[{T+2*e}:{T+2*e+1}], v[{T+2*e}:{T+2*e+1}], v[{fa}:{fa+1}]")
        A(f"v_cvt_pk_bf16_f32 v{OL+2*k}, v{T}, v{T+1}")
        A(f"v_cvt_pk_bf16_f32 v{OL+2*k+1}, v{T+2}, v{T+3}")
    A(f"s_branch L_{N}_cjoin")
    A.label(f"L_{N}_cX")
    steps = ["v_min_f32 v{mx}, v{nx}, v{ny}", "v_sub_f32 v{a}, v{mx}, v{nx}", "v_sub_f32 v{b}, v{mx}, v{ny}", "v_exp_f32 v{a}, v{a}", "v_exp_f32 v{b}, v{b}",
             "v_mul_f32 v{mx}, v{a}, v{lx}", "v_fmac_f32 v{mx}, v{b}, v{ly}", "v_rcp_f32 v{mx}, v{mx}", "s_nop 0",
             "v_mul_f32 v{a}, v{a}, v{mx}", "v_mul_f32 v{b}, v{b}, v{mx}", "v_mov_b32 v{a1}, v{a}", "v_mov_b32 v{b1}, v{b}"]
    for st_ in steps:
        for v in range(2):
            A(st_.format(mx=V_MX+v, nx=ML+v, ny=ML+4+v, lx=ML+2+v, ly=ML+6+v, a=FA_+2*v, a1=FA_+2*v+1, b=FA_+4+2*v, b1=FA_+5+2*v))
    for k in range(64):
        if k % 5 == 0 and k < 60: flat(od1[k//5])
        fa = FA_ + 2*(k // 32)
        A(f"v_pk_mul_f32 v[{OL+2*k}:{OL+2*k+1}], v[{OL+2*k}:{OL+2*k+1}], v[{fa}:{fa+1}]")
    A("s_barrier")
    for k in range(8): A(f"ds_read_b128 {vr(F+4*k, 4)}, {xaddr(k)}")
    for k in range(32):
        Y = F + 4*(k % 8); b = OL + 4*k; fb = FA_ + 4 + 2*(k // 16)
        A(f"s_waitcnt lgkmcnt({min(7, 31-k)})")
        for e in range(2): A(f"v_pk_fma_f32 v[{b+2*e}:{b+2*e+1}], v[{Y+2*e}:{Y+2*e+1}], v[{fb}:{fb+1}], v[{b+2*e}:{b+2*e+1}]")
        if k + 8 < 32: A(f"ds_read_b128 {vr(Y, 4)}, {xaddr(k+8)}")
        A(f"v_cvt_pk_bf16_f32 v{OL+2*k}, v{b}, v{b+1}")
        A(f"v_cvt_pk_bf16_f32 v{OL+2*k+1}, v{b+2}, v{b+3}")
    A.label(f"L_{N}_cjoin")
    RB5 = 8
    A(f"v_lshrrev_b32 v{V_T0}, 2, v{V_LANE}")
    A(f"v_lshlrev_b32 v{V_T0}, 7, v{V_T0}")
    A(f"v_and_b32 v{V_T1}, 3, v{V_LANE}")
    A(f"v_lshl_add_u32 v{V_T0}, v{V_T1}, 3, v{V_T0}")
    A(f"v_bfe_u32 v{V_T1}, v{V_LANE}, 3, 2")
    for p in range(4):
        A(f"v_xor_b32 v{V_T2}, {p}, v{V_T1}")
        A(f"v_lshl_add_u32 v{RB5+p}, v{V_T2}, 5, v{V_T0}")
    A("s_waitcnt vmcnt(12)")
    A("s_barrier")
    stmp("P4")
    AC0 = OL + 64; AC1 = OL + 80; PK = OL + 96; PK0 = OL + 104
    A(f"s_mul_i32 s{S_T0}, s{S_QB}, {28*16*1024}")
    A(f"s_lshl_b32 s{S_T1}, s{S_H}, 10")
    A(f"s_add_u32 s{S_T0}, s{S_T0}, s{S_T1}")
    A(f"s_add_u32 s{S_PA}, s{S_T0}, {SLAB_OFF}")
    A(f"s_add_u32 s{S_PX}, s{S_PA}, {7*65536}")
    A(f"s_lshl_b32 s{S_T1}, s{S_D}, 16")
    A(f"s_add_u32 s{S_KP}, s{S_PA}, s{S_T1}")
    A(f"s_mov_b32 s{S_VP}, {OOB}")
    A(f"s_mov_b32 s{S_PB}, 0")
    A(f"s_mov_b32 s{S_T2}, 49152")
    A(f"s_mov_b32 s{S_REND}, 98304")
    A(f"s_lshl_b32 s{S_JV}, s{S_I}, 7")
    A(f"s_add_u32 s{S_JV}, s{S_JV}, {FLG_OFF + 16*128}")
    A(f"v_mov_b32 v{V_T3}, 28")
    A(f"v_mov_b32 v{V_T4}, 1")
    def o_rd(j):
        mb, kk = j // 12, j % 12
        f = F + 4*(j % 8)
        return [f"ds_read_b64_tr_b16 {vr(f,2)}, v{RB5+mb} offset:{kk*4096} ;@f{j}", f"ds_read_b64_tr_b16 {vr(f+2,2)}, v{RB5+mb} offset:{kk*4096+2048} ;@f{j}"]
    def st(reg, off): return [f"s_add_u32 s{S_T1}, s{S_VP}, {off}", f"buffer_store_dwordx4 {vr(reg,4)}, v{V_L16}, s[{S_WS}:{S_WS+3}], s{S_T1} offen sc1"]
    cv0 = [f"v_cvt_pk_bf16_f32 v{PK0+e}, v{AC0+2*e}, v{AC0+2*e+1}" for e in range(8)]
    cv1 = [f"v_cvt_pk_bf16_f32 v{PK+e}, v{AC1+2*e}, v{AC1+2*e+1}" for e in range(8)]
    sig = [f"s_cmp_lg_u32 s{S_WAVE}, 0", "SKIP", "s_mov_b64 exec, 1",
           f"buffer_atomic_add v{V_T4}, v{V_T3}, s[{S_WS}:{S_WS+3}], s{S_JV} offen", "s_mov_b64 exec, -1", "ENDSKIP"]
    def bfr(v, kk): return vr(OL + 32*v + 4*kk, 4) if kk < 8 else ar(16*v + 4*(kk - 8), 4)
    M = []
    for pr in range(24):
        j = 2*pr; mb, kk = j // 12, j % 12
        v0 = pr % 2
        for (jj, v) in ((j, v0), (j+1, v0), (j+1, 1-v0), (j, 1-v0)):
            ac = vr((AC1 if mb >= 2 else AC0) + 8*v + 4*(mb & 1), 4)
            first = kk == 0 and ((v == v0 and jj == j) or (v != v0 and jj == j+1))
            M.append(f"{MF} {ac}, {vr(F+4*(jj%8),4)}, {bfr(v, jj % 12)}, {'0' if first else ac}")
    W = Weave(M)
    D5 = 6
    for pr in range(24):
        g0 = 4*pr
        W.pre[g0].append(f"WAITLDS f{2*pr+1}")
        j2 = 2*pr + D5
        if j2 == 48: W.post[g0-2] += ["s_waitcnt vmcnt(12)", "s_barrier"]
        r = o_rd(j2 % 48) + o_rd((j2 + 1) % 48)
        W.post[g0] += r[:2]; W.post[g0+1] += r[2:]
    def split(G):
        return G
    def put(g, grp):
        k = next(i for i, x in enumerate(grp) if x.startswith("buffer"))
        pre_ = [x for x in grp[:k] if x != "s_nop 0"]
        W.post[g-3] += pre_[:1]; W.post[g-1] += pre_[1:]
        W.post[g].append(grp[k]); W.post[g+1] += grp[k+1:]
    put(6, st(PK0, 0)); put(10, st(PK0+4, 16384))
    W.at(cv1[:4], [2, 2, 14, 14]) if False else None
    W.at(cv1, [14, 14, 18, 18, 11, 15, 22, 22])
    put(26, st(PK, 32768)); put(30, st(PK+4, 49152))
    for g, grp in zip([34, 38, 42, 46, 50, 54, 58, 62, 66, 70, 74, 78], o_dma(f"s{S_T2}")): put(g, grp)
    W.at(cv0, [55, 59, 67, 71, 75, 86, 86, 91])
    W.post[2] += [f"s_sub_u32 s{S_T0}, s{S_PB}, 49152", f"s_cselect_b32 s{S_T0}, s{S_REND}, s{S_T0}"]
    W.post[19] += [f"s_sub_u32 s{S_JK}, s{S_T0}, s{S_PB}"]
    W.post[35] += [f"v_add_u32 v{RB5}, s{S_JK}, v{RB5}"]
    W.post[39] += [f"v_add_u32 v{RB5+1}, s{S_JK}, v{RB5+1}"]
    W.post[83] += [f"v_add_u32 v{RB5+2}, s{S_JK}, v{RB5+2}"]
    W.post[87] += [f"v_add_u32 v{RB5+3}, s{S_JK}, v{RB5+3}"]
    W.post[43] += [f"s_mov_b32 s{S_VP}, s{S_KP}"]
    W.post[51] += [f"s_add_u32 s{S_KP}, s{S_KP}, 65536"]
    W.post[90] += [f"s_cmp_eq_u32 s{S_KP}, s{S_PX}", f"s_cselect_b32 s{S_KP}, s{S_PA}, s{S_KP}"]
    W.post[88] += [f"s_mov_b32 s{S_T2}, s{S_PB}"]
    W.post[89] += [f"s_mov_b32 s{S_PB}, s{S_T0}"]
    W.post[84] += sig
    W.post[94] += [f"s_cmp_ge_u32 s{S_CNT}, 4", f"s_cselect_b32 s{S_PQ}, {OOB}, s{S_PQ}", f"s_cselect_b32 s{S_P1}, {OOB}, s{S_P1}"]
    W.post[92] += [f"v_and_b32 v{V_T3}, 28, v{V_T2}"]
    W.post[93] += [f"v_add_u32 v{V_T2}, 4, v{V_T2}"]
    W.post[95] += [f"s_add_u32 s{S_CNT}, s{S_CNT}, 1", f"s_cmp_lt_u32 s{S_CNT}, 7"]
    print('P5 excess', W.excess(), 'total', sum(W.load(g) for g in range(96)))
    skn = [0]
    def flat_skip(L):
        for i in L:
            if i == "SKIP": A(f"s_cbranch_scc1 L_{N}_sk{skn[0]}")
            elif i == "ENDSKIP": A.label(f"L_{N}_sk{skn[0]}"); skn[0] += 1
            else: A(i)
    pre = []
    for j in range(D5): pre += o_rd(j)
    pre, qo = resolve_lds(pre, [])
    flat(pre)
    A(f"s_mov_b32 s{S_CNT}, 0")
    A(f"v_mov_b32 v{V_T2}, 0")
    A(".p2align 3")
    A.label(f"L_{N}_p5")
    l2, q1 = resolve_lds(W.lines(), qo)
    assert q1 == qo
    flat_skip(l2)
    A(f"s_cbranch_scc1 L_{N}_p5")
    A(f"s_load_dwordx2 s[{PT}:{PT+1}], s[0:1], 0")
    A(f"s_load_dwordx4 s[{PT+4}:{PT+7}], s[0:1], 80")
    V_TK = 2; V_TO = 3; V_FL = 4; V_FO = 5
    def ticket():
        A(f"v_mov_b32 v{V_TK}, 1")
        A("s_mov_b64 exec, 1")
        A(f"buffer_atomic_add v{V_TK}, v{V_TO}, s[{S_WS}:{S_WS+3}], s{S_JV} offen sc0")
        A("s_mov_b64 exec, -1")
    A(f"v_mov_b32 v{V_TO}, 32")
    A(f"v_and_b32 v{V_FO}, 7, v{V_LANE}")
    A(f"v_lshlrev_b32 v{V_FO}, 2, v{V_FO}")
    fld3 = f"buffer_load_dword v{V_FL}, v{V_FO}, s[{S_WS}:{S_WS+3}], s{S_JV} offen sc1"
    A(f"s_cmp_lg_u32 s{S_WAVE}, 0")
    A(f"s_cbranch_scc1 L_{N}_tk0")
    ticket()
    A(fld3)
    A.label(f"L_{N}_tk0")
    flat(st(PK0, 0)); flat(st(PK0+4, 16384))
    flat(cv1)
    flat(st(PK, 32768)); flat(st(PK+4, 49152))
    stmp("P5")
    A(f"v_and_b32 v{V_T0}, 15, v{V_LANE}")
    A(f"v_mul_u32_u24 v{V_T0}, 896, v{V_T0}")
    A(f"v_lshrrev_b32 v{V_T1}, 4, v{V_LANE}")
    A(f"v_lshlrev_b32 v{V_T1}, 3, v{V_T1}")
    A(f"v_add_u32 v{V_T0}, v{V_T0}, v{V_T1}")
    A(f"v_mov_b32 v{V_RD}, 0")
    A("s_waitcnt lgkmcnt(0)")
    srd(A, S_A, PT, 2048*448*2)
    srd(A, S_Bw, PT+4, 448*2)
    srd(A, S_C, PT+6, 2048*448*2)
    fld3 = f"buffer_load_dword v{V_FL}, v{V_FO}, s[{S_WS}:{S_WS+3}], s{S_JV} offen sc1"
    A("s_waitcnt vmcnt(0)")
    A("s_barrier")
    A(f"s_cmp_lg_u32 s{S_WAVE}, 0")
    A(f"s_cbranch_scc1 L_{N}_rw")
    A("s_mov_b64 exec, 1")
    A(f"buffer_atomic_add v{V_T4}, v{V_T3}, s[{S_WS}:{S_WS+3}], s{S_JV} offen")
    A("s_mov_b64 exec, -1")
    stmp("drain")
    A.label(f"L_{N}_rloop")
    A(f"s_cmp_lg_u32 s{S_WAVE}, 0")
    A(f"s_cbranch_scc1 L_{N}_rw")
    A(f"v_readfirstlane_b32 s{S_T0}, v{V_TK}")
    A("s_mov_b32 s3, 0")
    A(f"s_cmp_ge_u32 s{S_T0}, 28")
    A(f"s_cbranch_scc1 L_{N}_rpost")
    A(f"s_lshr_b32 s{S_T1}, s{S_T0}, 2")
    A.label(f"L_{N}_pl3")
    A(f"v_readlane_b32 s{S_X0}, v{V_FL}, s{S_T1}")
    A("s_add_u32 s3, s3, 1")
    A(f"s_cmp_ge_u32 s{S_X0}, 16")
    A(f"s_cbranch_scc1 L_{N}_rpost")
    A("s_cmp_ge_u32 s3, 0x400000")
    A(f"s_cbranch_scc1 L_{N}_rpost")
    A(fld3)
    A("s_waitcnt vmcnt(0)")
    A(f"s_branch L_{N}_pl3")
    A.label(f"L_{N}_rpost")
    A(f"v_mov_b32 v{V_T2}, s{S_T0}")
    A(f"ds_write_b32 v{V_RD}, v{V_T2}")
    A("s_waitcnt lgkmcnt(0)")
    A.label(f"L_{N}_rw")
    A("s_barrier")
    A(f"ds_read_b32 v{V_T2}, v{V_RD}")
    A(f"v_add_u32 v{V_RD}, 4, v{V_RD}")
    A("s_waitcnt lgkmcnt(0)")
    A(f"v_readfirstlane_b32 s{S_T0}, v{V_T2}")
    A("s_nop 3")
    A(f"s_cmp_ge_u32 s{S_T0}, 28")
    A(f"s_cbranch_scc1 L_{N}_fin")
    stmp("t_flag")
    A(f"s_mov_b32 s{S_PB}, s{S_T0}")
    if "T" in abl: A(f"s_mov_b32 s82, s{S_T0}")
    A(f"s_lshl_b32 s{S_T1}, s{S_I}, 1")
    A(f"s_sub_u32 s{S_T2}, 62, s{S_T1}")
    A(f"s_bitcmp1_b32 s{S_T0}, 1")
    A(f"s_cselect_b32 s{S_T1}, s{S_T2}, s{S_T1}")
    A(f"s_and_b32 s{S_T2}, s{S_T0}, 1")
    A(f"s_add_u32 s{S_QB}, s{S_T1}, s{S_T2}")
    A(f"s_lshr_b32 s{S_T0}, s{S_T0}, 2")
    A(f"s_add_u32 s{S_T0}, s{S_T0}, s{S_D}")
    A(f"s_sub_u32 s{S_T1}, s{S_T0}, 7")
    A(f"s_cselect_b32 s{S_T0}, s{S_T0}, s{S_T1}")
    A(f"s_lshl_b32 s{S_T0}, s{S_T0}, 2")
    A(f"s_add_u32 s{S_T0}, s{S_T0}, s{S_WAVE}")
    A(f"s_mul_i32 s{S_T1}, s{S_QB}, 28")
    A(f"s_add_u32 s{S_T1}, s{S_T1}, s{S_T0}")
    A(f"s_lshl_b32 s{S_KP}, s{S_T1}, 14")
    A(f"s_add_u32 s{S_KP}, s{S_KP}, {SLAB_OFF}")
    A(f"s_lshr_b32 s{S_JK}, s{S_T0}, 1")
    A(f"s_lshl_b32 s{S_JK}, s{S_JK}, 6")
    A(f"s_lshl_b32 s{S_T1}, s{S_QB}, 1")
    A(f"s_add_u32 s{S_T1}, s{S_T1}, s{S_RR}")
    A(f"s_mul_i32 s{S_JTK}, s{S_T1}, {16*896}")
    A(f"s_add_u32 s{S_JTK}, s{S_JTK}, s{S_JK}")
    R0 = 32
    b = R0 + 64
    for h in range(16):
        if h % 4 == 0 and h: A(f"s_add_u32 s{S_KP}, s{S_KP}, 4096")
        A(f"buffer_load_dwordx4 v[{R0+4*h}:{R0+4*h+3}], v{V_L16}, s[{S_WS}:{S_WS+3}], s{S_KP} offen offset:{(h % 4)*1024} sc1")
    A(f"buffer_load_dwordx2 v[{b}:{b+1}], v{V_T0}, s[{S_A}:{S_A+3}], s{S_JTK} offen")
    A(f"buffer_load_dwordx2 v[{b+2}:{b+3}], v{V_T0}, s[{S_A}:{S_A+3}], s{S_JTK} offen offset:32")
    A(f"buffer_load_dwordx2 v[{b+4}:{b+5}], v{V_T1}, s[{S_Bw}:{S_Bw+3}], s{S_JK} offen")
    A(f"buffer_load_dwordx2 v[{b+6}:{b+7}], v{V_T1}, s[{S_Bw}:{S_Bw+3}], s{S_JK} offen offset:32")
    AC = 192
    A(f"s_cmp_lg_u32 s{S_WAVE}, 0")
    A(f"s_cbranch_scc1 L_{N}_tk1")
    A(f"s_cmp_ge_u32 s{S_PB}, 24")
    A(f"s_cbranch_scc1 L_{N}_tk1")
    ticket()
    A(fld3)
    A.label(f"L_{N}_tk1")
    for h in range(18):
        A(f"s_waitcnt vmcnt({19-h if h < 16 else (2 if h == 16 else 0)})")
        if h == 17: stmp("t_ld")
        for e in range(4):
            src = R0 + 4*h + e
            if h == 0:
                A(f"v_lshlrev_b32 v{AC+2*e}, 16, v{src}")
                A(f"v_and_b32 v{AC+1+2*e}, 0xffff0000, v{src}")
            else:
                A(f"v_lshlrev_b32 v{V_T3}, 16, v{src}")
                A(f"v_and_b32 v{V_T4}, 0xffff0000, v{src}")
                A(f"v_pk_add_f32 v[{AC+2*e}:{AC+1+2*e}], v[{AC+2*e}:{AC+1+2*e}], v[{V_T3}:{V_T4}]")
    for e in range(4): A(f"v_cvt_pk_bf16_f32 v{AC+8+e}, v{AC+2*e}, v{AC+1+2*e}")
    A(f"buffer_store_dwordx2 v[{AC+8}:{AC+9}], v{V_T0}, s[{S_C}:{S_C+3}], s{S_JTK} offen")
    A(f"buffer_store_dwordx2 v[{AC+10}:{AC+11}], v{V_T0}, s[{S_C}:{S_C+3}], s{S_JTK} offen offset:32")
    A(f"s_cmp_ge_u32 s{S_PB}, 24")
    A(f"s_cbranch_scc1 L_{N}_fin")
    A("s_waitcnt vmcnt(2)")
    A(f"s_branch L_{N}_rloop")
    A.label(f"L_{N}_fin")
    if st_on:
        A("s_waitcnt vmcnt(0)")
        stmp("red")
        A(f"s_lshl_b32 s3, s2, 6")
        A(f"s_add_u32 s3, s3, {STAMP_OFF}")
        A("v_mov_b32 v2, 0")
        A("v_cmp_eq_u32 vcc, 0, v0")
        A("s_and_saveexec_b64 s[94:95], vcc")
        A(f"s_cbranch_execz L_{N}_end")
        if "D" in abl:
            idxs = [1, 2, 3, 4, 5, 6, 7, 9, 10]
            for i in range(1, sidx[0]):
                A(f"s_sub_u32 s3, s{64+2*i}, s64")
                A("v_mov_b32 v3, s3")
                A(f"global_atomic_umax v2, v3, s[100:101] offset:{4*idxs[i-1]}")
                A("s_nop 1")
            A("s_not_b32 s3, s64"); A("v_mov_b32 v3, s3"); A("global_atomic_umax v2, v3, s[100:101] offset:44"); A("s_nop 1")
            A(f"v_mov_b32 v3, s{64+2*(sidx[0]-1)}"); A("global_atomic_umax v2, v3, s[100:101] offset:48"); A("s_nop 1")
            A("v_mov_b32 v3, s64"); A("global_atomic_umax v2, v3, s[100:101] offset:52")
            A("s_endpgm")
        for i in range(sidx[0]):
            A(f"v_mov_b32 v3, s{64+2*i}")
            A(f"buffer_store_dword v3, v2, s[{S_WS}:{S_WS+3}], s3 offen offset:{4*i}")
            A("s_nop 1")
        if "T" in abl:
            A("v_mov_b32 v3, s82"); A(f"buffer_store_dword v3, v2, s[{S_WS}:{S_WS+3}], s3 offen offset:40")
            A(f"v_lshrrev_b32 v3, 2, v{V_RD}"); A(f"buffer_store_dword v3, v2, s[{S_WS}:{S_WS+3}], s3 offen offset:44")
    A.label(f"L_{N}_end")
    A("s_endpgm")
    return A

if __name__ == "__main__":
    import sys
    st = len(sys.argv) > 1 and sys.argv[1] == "1"
    out = sys.argv[2] if len(sys.argv) > 2 else "m5.s"
    A1 = gen(st_on=st, abl=(sys.argv[3] if len(sys.argv) > 3 else ""))
    if "A" in (sys.argv[3] if len(sys.argv) > 3 else ""):
        from align import align
        ab_ = (sys.argv[3] if len(sys.argv) > 3 else '')
        A1.L = align(A1.L, nop_run=(1 if 'N' in ab_ else 5 if 'M' in ab_ else None))
    errs = check(A1.L, "m3")
    print("\n".join(errs[:40])); print("hazard errs:", len(errs), "lines", len(A1.L))
    hdr = open("parallel_sum__compressed_kv_cla__dense_activation_squared_relu__prompt.s.ref").read().split("; Override")[0]
    s = hdr + "; @launch kernel=fused_kernel grid=(256,1,1) block=(256,1,1) lds=163840\n" \
        + '.amdgcn_target "amdgcn-amd-amdhsa--gfx950"\n.text\n' + A1.text() + kd("fused_kernel", 512, 256)
    open(out, "w").write(s)
    print(NAMES)
```
